```python
import torch

def _softmax(x, axis=-1):
    return torch.softmax(x, dim=axis)
def _gelu(x):
    return torch.nn.functional.gelu(x, approximate="tanh")
def _silu(x):
    return torch.nn.functional.silu(x)
def _sigmoid(x):
    return torch.sigmoid(x)
def _layernorm(x, axis=-1, eps=1e-5):
    m = x.mean(dim=axis, keepdim=True)
    v = x.var(dim=axis, keepdim=True, unbiased=False)
    return (x - m) / torch.sqrt(v + eps)
def _scatter_add(tgt, idx, src, axis=0):
    return tgt.clone().index_add_(axis, idx, src)
def _segment_sum(src, seg, n):
    out = torch.zeros((n,) + src.shape[1:], dtype=src.dtype)
    return out.index_add_(0, seg, src)
def _pad(x, pw):
    flat = tuple(v for pair in reversed(pw) for v in pair)
    return torch.nn.functional.pad(x, flat)

kernel_name = 'recurrent_scan__spectral_gfnet__dense_activation_silu__prompt'

def setup_inputs():

    _w = (lambda a: (lambda t: t.to(torch.bfloat16) if t.is_floating_point() else t)(torch.as_tensor(a)))
    def _A_setup():
        B, S, D = 1, 2048, 512
        Df = D // 2 + 1
        return {
            "x": _w((lambda *s: torch.randn(*s, dtype=torch.bfloat16) * 0.05)(B, S, D)),
            "w_r": _w((lambda *s: torch.randn(*s, dtype=torch.bfloat16) * 3.2)(S, Df) * 0.02),
            "w_i": _w((lambda *s: torch.randn(*s, dtype=torch.bfloat16) * 3.2)(S, Df) * 0.02),
        }
    _A_in = _A_setup()

    def _B_setup():
        B, S, D, F = 1, 2048, 512, 1376
        return {
            "x": _w((lambda *s: torch.randn(*s, dtype=torch.bfloat16) * 0.05)(B, S, D)),
            "w1": _w((lambda *s: torch.randn(*s, dtype=torch.bfloat16) * 3.2)(D, F) * (D ** -0.5)),
            "w2": _w((lambda *s: torch.randn(*s, dtype=torch.bfloat16) * 0.4)(F, D) * (F ** -0.5)),
        }
    _B_in = _B_setup()

    return {
        "A_x": _A_in["x"],
        "A_w_r": _A_in["w_r"],
        "A_w_i": _A_in["w_i"],
        "B_x": _B_in["x"],
        "B_w1": _B_in["w1"],
        "B_w2": _B_in["w2"],
    }

def reference(A_x, A_w_r, A_w_i, B_x, B_w1, B_w2):
    def _A_ref(x, w_r, w_i):
        B, S, D = x.shape
        X = (lambda x, axes=(-2,-1): torch.fft.rfft2(x.float(), dim=axes))(x, axes=(-2, -1))
        W = w_r + 1j * w_i
        X = X * W
        y = (lambda x, s, axes=(-2,-1): torch.fft.irfft2(x, s=s, dim=axes).to(torch.bfloat16))(X, (S, D), axes=(-2, -1))
        return y

    def _B_ref(x, w1, w2):
        h = torch.einsum("bsd,df->bsf", x, w1)
        h = _silu(h)
        out = torch.einsum("bsf,fd->bsd", h, w2)
        return out

    x = A_x
    xn = _layernorm(x, axis=-1)
    s = _A_ref(xn, A_w_r, A_w_i)
    g = _silu(_B_ref(xn, B_w1, B_w2))
    return x + s * g
```

```python
import re
import struct

TRANS = ("v_exp_f32", "v_log_f32", "v_rcp_f32", "v_rsq_f32", "v_sqrt_f32", "v_sin_f32", "v_cos_f32",
         "v_rcp_iflag_f32")


def f2u(x):
    return struct.unpack("<I", struct.pack("<f", float(x)))[0]


def fhex(x):
    return "0x%08x" % f2u(x)


_range_re = re.compile(r"^(-?)\|?([vas])\[(\d+):(\d+)\]\|?$")
_single_re = re.compile(r"^(-?)\|?([vas])(\d+)\|?$")


def parse_reg(tok):
    tok = tok.strip()
    if tok.startswith("abs(") and tok.endswith(")"):
        tok = tok[4:-1]
    if tok.startswith("-abs(") and tok.endswith(")"):
        tok = tok[5:-1]
    m = _range_re.match(tok)
    if m:
        return ["%s%d" % (m.group(2), i) for i in range(int(m.group(3)), int(m.group(4)) + 1)]
    m = _single_re.match(tok)
    if m:
        return ["%s%d" % (m.group(2), int(m.group(3)))]
    if tok in ("vcc", "exec", "m0", "scc"):
        return [tok]
    if tok in ("vcc_lo", "vcc_hi"):
        return ["vcc"]
    if tok in ("exec_lo", "exec_hi"):
        return ["exec"]
    return []


class Inst:
    __slots__ = ("text", "mn", "kind", "writes", "reads", "ops", "passes", "srcC", "srcAB", "mods")

    def __init__(self, text):
        self.text = text
        body = text.split(";")[0].strip()
        parts = body.split(None, 1)
        self.mn = parts[0]
        rest = parts[1] if len(parts) > 1 else ""
        raw = [p.strip() for p in rest.split(",")] if rest else []
        ops = []
        mods = []
        for i, p in enumerate(raw):
            toks = p.split()
            if not toks:
                continue
            ops.append(toks[0])
            mods.extend(toks[1:])
        self.ops = ops
        self.mods = mods
        mn = self.mn
        self.passes = 0
        self.srcC = []
        self.srcAB = []
        if mn.startswith("v_mfma"):
            self.kind = "MFMA"
            self.passes = 8 if "32x32x16" in mn or "32x32x8" in mn else 4
            if "32x32x2_f32" in mn:
                self.passes = 16
            if "16x16x4_f32" in mn:
                self.passes = 8
        elif mn in TRANS or mn.rstrip("_e32").rstrip("_e64") in TRANS:
            self.kind = "TRANS"
        elif mn.startswith("v_"):
            self.kind = "VALU"
        elif mn.startswith(("buffer_", "global_", "flat_", "scratch_")):
            self.kind = "VMEM"
        elif mn.startswith("ds_"):
            self.kind = "DS"
        elif mn.startswith(("s_load", "s_buffer_load", "s_memtime", "s_memrealtime")):
            self.kind = "SMEM"
        else:
            self.kind = "SALU"
        for md in mods:
            if md.startswith("offset:") and mn.startswith("buffer_"):
                assert int(md[7:], 0) < 4096, "MUBUF offset too large: " + text
            if md.startswith("offset:") and mn.startswith("ds_"):
                assert int(md[7:], 0) < 65536, "DS offset too large: " + text
        W, R = [], []
        allregs = [parse_reg(o) for o in ops]
        nodst = (mn.startswith(("buffer_store", "global_store", "ds_write", "s_cmp", "s_cbranch", "s_branch",
                                "s_barrier", "s_waitcnt", "s_nop", "s_endpgm", "s_setprio", "s_sleep",
                                "buffer_atomic", "global_atomic")))
        if nodst:
            for r in allregs:
                R += r
        elif mn.startswith("v_cmpx"):
            W += allregs[0] + ["exec"]
            for r in allregs[1:]:
                R += r
        elif mn.startswith("v_cmp"):
            W += allregs[0]
            for r in allregs[1:]:
                R += r
        elif mn.startswith(("v_add_co", "v_sub_co", "v_subrev_co")):
            W += allregs[0] + allregs[1]
            for r in allregs[2:]:
                R += r
        elif mn.startswith(("v_addc_co", "v_subb_co")):
            W += allregs[0] + allregs[1]
            for r in allregs[2:]:
                R += r
        elif mn.startswith("s_and_saveexec") or mn.startswith("s_or_saveexec"):
            W += allregs[0] + ["exec"]
            R += allregs[1] + ["exec"]
        elif mn.startswith("v_permlane") and "swap" in mn:
            W += allregs[0] + allregs[1]
            R += allregs[0] + allregs[1]
        elif self.kind == "VMEM" and "lds" in mods:
            for r in allregs:
                R += r
            R.append("m0")
        else:
            if allregs:
                W += allregs[0]
                for r in allregs[1:]:
                    R += r
            if mn.startswith(("v_fmac", "v_pk_fmac", "v_mac")):
                R += allregs[0]
        if self.kind == "MFMA":
            self.srcAB = allregs[1] + allregs[2]
            self.srcC = allregs[3] if len(allregs) > 3 else []
        if mn == "v_cndmask_b32" and len(ops) == 3:
            R.append("vcc")
        if mn.startswith(("v_addc_co", "v_subb_co")):
            pass
        self.writes = W
        self.reads = R

    def ws(self):
        if self.mn == "s_nop":
            return int(self.ops[0], 0) + 1
        return 1


def is_valu(k):
    return k in ("VALU", "TRANS")


def required_gap(prod, cons):
    need = 0
    pw = set(prod.writes)
    cr = set(cons.reads)
    cw = set(cons.writes)
    vg_w = {r for r in pw if r[0] in "va" and r not in ("vcc",)}
    sg_w = {r for r in pw if (r[0] == "s" and r != "scc") or r == "vcc"}
    if prod.kind == "TRANS" and cons.kind == "VALU" and (vg_w & cr):
        need = max(need, 1)
    if is_valu(prod.kind):
        if sg_w & cr:
            if is_valu(cons.kind):
                need = max(need, 2)
                if cons.mn.startswith(("v_readlane", "v_writelane")):
                    need = max(need, 4)
            if cons.kind == "VMEM":
                need = max(need, 5)
        if vg_w & cr:
            if cons.mn.startswith(("v_readlane", "v_readfirstlane")):
                need = max(need, 1)
            if cons.kind == "MFMA":
                need = max(need, 2)
            if cons.mn.startswith("v_permlane"):
                need = max(need, 2)
            if any(m.startswith(("row_", "quad_perm", "wave_", "row_bcast")) for m in cons.mods):
                need = max(need, 2)
        if "exec" in pw and cons.kind == "MFMA":
            need = max(need, 4)
    if prod.kind == "MFMA":
        P = prod.passes
        D = set(prod.writes)
        tbl_ab = {2: 5, 4: 8, 8: 12, 16: 20}[P]
        tbl_c = {2: 4, 4: 6, 8: 10, 16: 18}[P]
        if cons.kind == "MFMA":
            if D & set(cons.srcAB):
                need = max(need, tbl_ab)
            if D & set(cons.srcC):
                if set(cons.srcC) == D and cons.passes == P:
                    need = max(need, 2 if P == 2 else 0)
                else:
                    need = max(need, tbl_c)
        else:
            if D & (cr | cw):
                need = max(need, tbl_ab)
        if is_valu(cons.kind) and (set(prod.srcC) & cw):
            need = max(need, {2: 1, 4: 3, 8: 7, 16: 15}[P])
    if prod.kind == "VMEM" and ("store" in prod.mn) and prod.mn.endswith(("x3", "x4")):
        data = set(parse_reg(prod.ops[1] if prod.mn.startswith("global") else prod.ops[0]))
        if data & cw:
            need = max(need, 2 if is_valu(cons.kind) else 1)
    if prod.kind == "SALU" and "m0" in pw and ("m0" in cr):
        need = max(need, 1)
    return need


class Kern:
    def __init__(self, name):
        self.name = name
        self.items = []
        self._lbl = 0

    def __call__(self, text):
        for line in text.strip().split("\n"):
            line = line.strip()
            if not line or line.startswith(";"):
                continue
            self.items.append(Inst(line))

    def label(self, name):
        self.items.append(name + ":")

    def newlabel(self, base="L"):
        self._lbl += 1
        return "%s_%s_%d" % (base, self.name, self._lbl)

    def comment(self, c):
        self.items.append("; " + c)

    def finalize(self):
        out = []
        for it in self.items:
            if isinstance(it, str):
                out.append(it)
                continue
            dist = 0
            need_extra = 0
            for p in reversed(out):
                if isinstance(p, str):
                    continue
                g = required_gap(p, it)
                if g > dist:
                    need_extra = max(need_extra, g - dist)
                dist += p.ws()
                if dist >= 24:
                    break
            while need_extra > 0:
                n = min(need_extra, 16)
                out.append(Inst("s_nop %d" % (n - 1)))
                need_extra -= n
            out.append(it)
        lines = []
        for it in out:
            if isinstance(it, str):
                lines.append(it)
            else:
                lines.append("    " + it.text)
        return "\n".join(lines)


class Pool:
    def __init__(self, regs):
        self.free_list = list(regs)
        self.high = 0

    def alloc(self):
        r = self.free_list.pop(0)
        self.high = max(self.high, r)
        return r

    def alloc_n(self, n, align=1):
        s = sorted(self.free_list)
        ss = set(s)
        for r in s:
            if r % align == 0 and all((r + i) in ss for i in range(n)):
                for i in range(n):
                    self.free_list.remove(r + i)
                self.high = max(self.high, r + n - 1)
                return r
        raise RuntimeError("no contiguous regs")

    def free(self, r):
        if isinstance(r, (list, tuple)):
            for x in r:
                self.free(x)
            return
        assert r not in self.free_list, r
        self.free_list.append(r)

    def free_n(self, r, n):
        for i in range(n):
            self.free(r + i)
```

```python
from asmlib import fhex


class FFTB:
    def __init__(self, k, pool, s_rs2):
        self.k = k
        self.pool = pool
        self.s_rs2 = s_rs2

    def add(self, a, b, dst=None):
        r = self.pool.alloc() if dst is None else dst
        self.k(f"v_add_f32 v{r}, v{a}, v{b}")
        return r

    def sub(self, a, b, dst=None):
        r = self.pool.alloc() if dst is None else dst
        self.k(f"v_sub_f32 v{r}, v{a}, v{b}")
        return r

    def free(self, *cs):
        for c in cs:
            self.pool.free(c[0])
            self.pool.free(c[1])

    def bfly(self, a, b, rot=0, outs=None):
        ds = outs[0] if outs else (None, None)
        dd = outs[1] if outs else (None, None)
        if rot == 0:
            s = (self.add(a[0], b[0], ds[0]), self.add(a[1], b[1], ds[1]))
            d = (self.sub(a[0], b[0], dd[0]), self.sub(a[1], b[1], dd[1]))
        elif rot == -1:
            s = (self.add(a[0], b[1], ds[0]), self.sub(a[1], b[0], ds[1]))
            d = (self.sub(a[0], b[1], dd[0]), self.add(a[1], b[0], dd[1]))
        else:
            s = (self.sub(a[0], b[1], ds[0]), self.add(a[1], b[0], ds[1]))
            d = (self.add(a[0], b[1], dd[0]), self.sub(a[1], b[0], dd[1]))
        self.free(a, b)
        return s, d

    def radix4(self, c, inv, rot2=0, outs=None):
        e0, e1 = self.bfly(c[0], c[2], rot2)
        e2, e3 = self.bfly(c[1], c[3])
        o = outs if outs else [None] * 4
        Y0, Y2 = self.bfly(e0, e2, 0, (o[0], o[2]) if outs else None)
        Y1, Y3 = self.bfly(e1, e3, +1 if inv else -1, (o[1], o[3]) if outs else None)
        return [Y0, Y1, Y2, Y3]

    def rot45(self, x, inv):
        k = self.k
        p = self.pool
        t0 = p.alloc()
        t1 = p.alloc()
        if not inv:
            k(f"v_add_f32 v{t0}, v{x[0]}, v{x[1]}")
            k(f"v_sub_f32 v{t1}, v{x[1]}, v{x[0]}")
        else:
            k(f"v_sub_f32 v{t0}, v{x[0]}, v{x[1]}")
            k(f"v_add_f32 v{t1}, v{x[0]}, v{x[1]}")
        k(f"v_mul_f32 v{t0}, {self.s_rs2}, v{t0}")
        k(f"v_mul_f32 v{t1}, {self.s_rs2}, v{t1}")
        self.free(x)
        return (t0, t1)

    def rot135(self, x, inv):
        k = self.k
        p = self.pool
        t0 = p.alloc()
        t1 = p.alloc()
        if not inv:
            k(f"v_sub_f32 v{t0}, v{x[1]}, v{x[0]}")
            k(f"v_add_f32 v{t1}, v{x[0]}, v{x[1]}")
            k(f"v_mul_f32 v{t0}, {self.s_rs2}, v{t0}")
            k(f"v_mul_f32_e64 v{t1}, -v{t1}, {self.s_rs2}")
        else:
            k(f"v_add_f32 v{t0}, v{x[0]}, v{x[1]}")
            k(f"v_sub_f32 v{t1}, v{x[0]}, v{x[1]}")
            k(f"v_mul_f32_e64 v{t0}, -v{t0}, {self.s_rs2}")
            k(f"v_mul_f32 v{t1}, {self.s_rs2}, v{t1}")
        self.free(x)
        return (t0, t1)

    def radix8(self, x, inv, outs=None):
        a = [None] * 4
        b = [None] * 4
        for j in range(4):
            a[j], b[j] = self.bfly(x[j], x[j + 4])
        b[1] = self.rot45(b[1], inv)
        b[3] = self.rot135(b[3], inv)
        oa = [outs[0], outs[2], outs[4], outs[6]] if outs else None
        ob = [outs[1], outs[3], outs[5], outs[7]] if outs else None
        A = self.radix4(a, inv, 0, oa)
        B = self.radix4(b, inv, +1 if inv else -1, ob)
        X = [None] * 8
        for i in range(4):
            X[2 * i] = A[i]
            X[2 * i + 1] = B[i]
        return X

    def cmul(self, x, c, s, nsin=False):
        k = self.k
        p = self.pool
        t = p.alloc()
        u = p.alloc()
        k(f"v_mul_f32 v{t}, v{x[0]}, v{c}")
        if not nsin:
            k(f"v_mul_f32 v{u}, v{x[0]}, v{s}")
            k(f"v_fma_f32 v{t}, -v{x[1]}, v{s}, v{t}")
            k(f"v_fma_f32 v{u}, v{x[1]}, v{c}, v{u}")
        else:
            k(f"v_mul_f32_e64 v{u}, -v{x[0]}, v{s}")
            k(f"v_fma_f32 v{t}, v{x[1]}, v{s}, v{t}")
            k(f"v_fma_f32 v{u}, v{x[1]}, v{c}, v{u}")
        self.free(x)
        return (t, u)

    def twiddle(self, x, vk, scale, R):
        k = self.k
        p = self.pool
        f = p.alloc()
        k(f"v_cvt_f32_u32 v{f}, v{vk}")
        k(f"v_mul_f32 v{f}, {fhex(scale)}, v{f}")
        for r in range(1, R):
            a = p.alloc()
            c = p.alloc()
            s = p.alloc()
            if r == 1:
                k(f"v_mov_b32 v{a}, v{f}")
            else:
                k(f"v_mul_f32 v{a}, {fhex(float(r))}, v{f}")
            k(f"v_cos_f32 v{c}, v{a}")
            k(f"v_sin_f32 v{s}, v{a}")
            x[r] = self.cmul(x[r], c, s)
            p.free(a)
            p.free(c)
            p.free(s)
        p.free(f)
        return x
```

```python
import math
import sys
from asmlib import Kern, Pool, fhex
from fftlib import FFTB

MB = 1 << 20
XN_OFF = 0
YT_OFF = 2 * MB
ZT_OFF = 8 * MB
WT_OFF = 14 * MB
W1T_OFF = 17 * MB
W2T_OFF = 19 * MB
H_OFF = 21 * MB
G_OFF = 28 * MB
WS_BYTES = 268435456

S, D, F = 2048, 512, 1376
FP = 1408

KA_X, KA_WR, KA_WI, KA_BX, KA_W1, KA_W2, KA_OUT, KA_DBG, KA_WS = [8 * i for i in range(9)]


def srd(k, s, sptr, nbytes):
    k(f"s_mov_b32 s{s}, s{sptr}")
    k(f"s_and_b32 s{s+1}, s{sptr+1}, 0xffff")
    k(f"s_mov_b32 s{s+2}, {nbytes}")
    k(f"s_mov_b32 s{s+3}, 0x00020000")


def wave_sum(k, pool, vals, vperm32):
    for m in (1, 2, 4, 8, 16):
        off = (m << 10) | 0x1F
        tmps = [pool.alloc() for _ in vals]
        for v, t in zip(vals, tmps):
            k(f"ds_swizzle_b32 v{t}, v{v} offset:{off}")
        k("s_waitcnt lgkmcnt(0)")
        for v, t in zip(vals, tmps):
            k(f"v_add_f32 v{v}, v{v}, v{t}")
        pool.free(tmps)
    tmps = [pool.alloc() for _ in vals]
    for v, t in zip(vals, tmps):
        k(f"ds_bpermute_b32 v{t}, v{vperm32}, v{v}")
    k("s_waitcnt lgkmcnt(0)")
    for v, t in zip(vals, tmps):
        k(f"v_add_f32 v{v}, v{v}, v{t}")
    pool.free(tmps)


def bf16_round_pair(k, pool, a, b):
    t = pool.alloc()
    k(f"v_cvt_pk_bf16_f32 v{t}, v{a}, v{b}")
    k(f"v_lshlrev_b32 v{a}, 16, v{t}")
    k(f"v_and_b32 v{b}, 0xffff0000, v{t}")
    pool.free(t)


def gen_transpose_role(k, tag, wg0, ntr, ntc, src_srds, src_pitch, ncols_src, dst_off, dst_pitch_elems,
                       dst_rows_valid, packed):
    esz = 4 if packed else 2
    k(f"s_sub_u32 s20, s2, {wg0}")
    if ntr & (ntr - 1) == 0:
        lg = ntr.bit_length() - 1
        k(f"s_and_b32 s21, s20, {ntr-1}")
        k(f"s_lshr_b32 s22, s20, {lg}")
    else:
        magic = (1 << 32) // ntr + 1
        k(f"s_mul_hi_u32 s22, s20, {magic}")
        k(f"s_mul_i32 s23, s22, {ntr}")
        k(f"s_sub_u32 s21, s20, s23")
    k("s_lshl_b32 s21, s21, 6")
    k("s_lshl_b32 s22, s22, 6")
    k("v_and_b32 v1, 63, v0")
    k("v_lshrrev_b32 v2, 6, v0")
    k("v_lshlrev_b32 v3, 4, v2")
    k("v_add_u32 v3, s21, v3")
    k(f"s_mov_b32 s23, {src_pitch}")
    k("v_mul_lo_u32 v3, v3, s23")
    k("v_add_u32 v4, s22, v1")
    k("v_lshl_add_u32 v3, v4, 1, v3")
    k(f"v_cmp_gt_u32 vcc, {ncols_src}, v4")
    nsrc = len(src_srds)
    base = 8
    for a, sr in enumerate(src_srds):
        for i in range(16):
            k(f"s_mov_b32 s24, {i*src_pitch}")
            k(f"buffer_load_ushort v{base + a*16 + i}, v3, s[{sr}:{sr+3}], s24 offen")
    k("s_waitcnt vmcnt(0)")
    for a in range(nsrc):
        for i in range(16):
            r = base + a * 16 + i
            k(f"v_cndmask_b32 v{r}, 0, v{r}, vcc")
    if packed:
        for i in range(16):
            k(f"v_lshl_or_b32 v{base+i}, v{base+16+i}, 16, v{base+i}")
    k("v_mul_u32_u24 v5, 65, v1")
    k("v_lshl_add_u32 v5, v2, 4, v5")
    k("v_lshlrev_b32 v5, 2, v5")
    for i in range(16):
        k(f"ds_write_b32 v5, v{base+i} offset:{4*i}")
    k("s_waitcnt lgkmcnt(0)")
    k("s_barrier")
    k("v_mul_u32_u24 v6, 65, v2")
    k("v_lshlrev_b32 v6, 4, v6")
    k("v_add_u32 v6, v6, v1")
    k("v_lshlrev_b32 v6, 2, v6")
    for i in range(16):
        k(f"ds_read_b32 v{base+i}, v6 offset:{4*65*i}")
    k("v_lshlrev_b32 v7, 4, v2")
    k("v_add_u32 v7, s22, v7")
    k(f"s_mov_b32 s23, {dst_pitch_elems}")
    k("v_mul_lo_u32 v7, v7, s23")
    k("v_add_u32 v7, v7, v1")
    k("v_add_u32 v7, s21, v7")
    k(f"v_lshlrev_b32 v7, {2 if packed else 1}, v7")
    k("s_waitcnt lgkmcnt(0)")
    done = k.newlabel("Ltd" + tag)
    k("v_readfirstlane_b32 s25, v2")
    k("s_lshl_b32 s25, s25, 4")
    k("s_add_u32 s25, s25, s22")
    for i in range(16):
        k(f"s_add_u32 s26, s25, {i}")
        k(f"s_cmp_ge_u32 s26, {dst_rows_valid}")
        k(f"s_cbranch_scc1 {done}")
        k(f"s_mov_b32 s24, {dst_off + i*dst_pitch_elems*esz}")
        if packed:
            k(f"buffer_store_dword v{base+i}, v7, s[12:15], s24 offen")
        else:
            k(f"buffer_store_short v{base+i}, v7, s[12:15], s24 offen")
    k.label(done)
    k("s_endpgm")


NWG_FFT1 = 256
NT_W = 32 * 5
NT_W1 = 8 * 22
NT_W2 = 22 * 8
K1_WGS = NWG_FFT1 + NT_W + NT_W1 + NT_W2


def gen_k1():
    k = Kern("k1")
    k(f"s_cmp_ge_u32 s2, {K1_WGS}")
    k("s_cbranch_scc1 Lend_k1")
    k(f"s_load_dwordx2 s[4:5], s[0:1], {KA_X}")
    k(f"s_load_dwordx2 s[6:7], s[0:1], {KA_WS}")
    k(f"s_load_dwordx4 s[28:31], s[0:1], {KA_WR}")
    k(f"s_load_dwordx4 s[32:35], s[0:1], {KA_W1}")
    k("s_waitcnt lgkmcnt(0)")
    srd(k, 8, 4, S * D * 2)
    srd(k, 12, 6, WS_BYTES)
    k(f"s_cmp_ge_u32 s2, {NWG_FFT1}")
    k("s_cbranch_scc1 Ltrans_k1")
    pool = Pool(range(8, 128))
    fb = FFTB(k, pool, "s16")
    k(f"s_mov_b32 s16, {fhex(math.sqrt(0.5))}")
    k("v_and_b32 v1, 63, v0")
    k("v_lshrrev_b32 v2, 6, v0")
    k("s_lshl_b32 s17, s2, 13")
    k("v_lshlrev_b32 v3, 11, v2")
    k("v_lshl_add_u32 v3, v1, 1, v3")
    k("v_add_u32 v3, s17, v3")
    k("v_xor_b32 v4, 32, v1")
    k("v_lshlrev_b32 v4, 2, v4")
    k("v_lshlrev_b32 v5, 12, v2")
    a = [pool.alloc() for _ in range(8)]
    b = [pool.alloc() for _ in range(8)]
    for j in range(8):
        k(f"buffer_load_ushort v{a[j]}, v3, s[8:11], 0 offen offset:{128*j}")
    for j in range(8):
        k(f"buffer_load_ushort v{b[j]}, v3, s[8:11], 0 offen offset:{1024+128*j}")
    k("s_waitcnt vmcnt(0)")
    for j in range(8):
        k(f"v_lshlrev_b32 v{a[j]}, 16, v{a[j]}")
        k(f"v_lshlrev_b32 v{b[j]}, 16, v{b[j]}")
    sa = pool.alloc()
    sb = pool.alloc()
    k(f"v_add_f32 v{sa}, v{a[0]}, v{a[1]}")
    k(f"v_add_f32 v{sb}, v{b[0]}, v{b[1]}")
    for j in range(2, 8):
        k(f"v_add_f32 v{sa}, v{sa}, v{a[j]}")
        k(f"v_add_f32 v{sb}, v{sb}, v{b[j]}")
    wave_sum(k, pool, [sa, sb], 4)
    k(f"v_mul_f32 v{sa}, {fhex(1.0/512)}, v{sa}")
    k(f"v_mul_f32 v{sb}, {fhex(1.0/512)}, v{sb}")
    qa = pool.alloc()
    qb = pool.alloc()
    t = pool.alloc()
    k(f"v_mov_b32 v{qa}, 0")
    k(f"v_mov_b32 v{qb}, 0")
    for j in range(8):
        k(f"v_sub_f32 v{t}, v{a[j]}, v{sa}")
        k(f"v_fma_f32 v{qa}, v{t}, v{t}, v{qa}")
        k(f"v_sub_f32 v{t}, v{b[j]}, v{sb}")
        k(f"v_fma_f32 v{qb}, v{t}, v{t}, v{qb}")
    pool.free(t)
    wave_sum(k, pool, [qa, qb], 4)
    k(f"v_mul_f32 v{qa}, {fhex(1.0/512)}, v{qa}")
    k(f"v_mul_f32 v{qb}, {fhex(1.0/512)}, v{qb}")
    bf16_round_pair(k, pool, sa, sb)
    bf16_round_pair(k, pool, qa, qb)
    k(f"v_add_f32 v{qa}, {fhex(1e-5)}, v{qa}")
    k(f"v_add_f32 v{qb}, {fhex(1e-5)}, v{qb}")
    bf16_round_pair(k, pool, qa, qb)
    k(f"v_sqrt_f32 v{qa}, v{qa}")
    k(f"v_sqrt_f32 v{qb}, v{qb}")
    bf16_round_pair(k, pool, qa, qb)
    k(f"v_rcp_f32 v{qa}, v{qa}")
    k(f"v_rcp_f32 v{qb}, v{qb}")
    pk = [pool.alloc() for _ in range(8)]
    for j in range(8):
        k(f"v_sub_f32 v{a[j]}, v{a[j]}, v{sa}")
        k(f"v_sub_f32 v{b[j]}, v{b[j]}, v{sb}")
        bf16_round_pair(k, pool, a[j], b[j])
        k(f"v_mul_f32 v{a[j]}, v{a[j]}, v{qa}")
        k(f"v_mul_f32 v{b[j]}, v{b[j]}, v{qb}")
        k(f"v_cvt_pk_bf16_f32 v{pk[j]}, v{a[j]}, v{b[j]}")
        k(f"v_lshlrev_b32 v{a[j]}, 16, v{pk[j]}")
        k(f"v_and_b32 v{b[j]}, 0xffff0000, v{pk[j]}")
    for j in range(8):
        k(f"buffer_store_short v{pk[j]}, v3, s[12:15], 0 offen offset:{128*j}")
        k(f"buffer_store_short_d16_hi v{pk[j]}, v3, s[12:15], 0 offen offset:{1024+128*j}")
    pool.free(pk)
    pool.free([sa, sb, qa, qb])
    x = [(a[j], b[j]) for j in range(8)]
    vrd = pool.alloc()
    k(f"v_lshl_add_u32 v{vrd}, v1, 3, v5")
    outs = [pool.alloc_n(2, 2) for _ in range(8)]
    X = fb.radix8(x, False, [(o, o + 1) for o in outs])
    vw = pool.alloc()
    k(f"v_lshl_add_u32 v{vw}, v1, 6, v5")
    for r in range(8):
        k(f"ds_write_b64 v{vw}, v[{outs[r]}:{outs[r]+1}] offset:{8*r}")
    k("s_waitcnt lgkmcnt(0)")
    ins = outs
    for r in range(8):
        k(f"ds_read_b64 v[{ins[r]}:{ins[r]+1}], v{vrd} offset:{512*r}")
    k("s_waitcnt lgkmcnt(0)")
    x = [(ins[r], ins[r] + 1) for r in range(8)]
    vk = pool.alloc()
    k(f"v_and_b32 v{vk}, 7, v1")
    x = fb.twiddle(x, vk, -1.0 / 64, 8)
    outs = [pool.alloc_n(2, 2) for _ in range(8)]
    X = fb.radix8(x, False, [(o, o + 1) for o in outs])
    k(f"v_lshrrev_b32 v{vw}, 3, v1")
    k(f"v_lshl_add_u32 v{vw}, v{vw}, 9, v5")
    k(f"v_lshl_add_u32 v{vw}, v{vk}, 3, v{vw}")
    for r in range(8):
        k(f"ds_write_b64 v{vw}, v[{outs[r]}:{outs[r]+1}] offset:{64*r}")
    k("s_waitcnt lgkmcnt(0)")
    ins = outs
    for r in range(8):
        k(f"ds_read_b64 v[{ins[r]}:{ins[r]+1}], v{vrd} offset:{512*r}")
    k("s_waitcnt lgkmcnt(0)")
    x = [(ins[r], ins[r] + 1) for r in range(8)]
    x = fb.twiddle(x, 1, -1.0 / 512, 8)
    outs = [pool.alloc_n(2, 2) for _ in range(8)]
    X = fb.radix8(x, False, [(o, o + 1) for o in outs])
    for r in range(8):
        k(f"ds_write_b64 v{vrd}, v[{outs[r]}:{outs[r]+1}] offset:{512*r}")
    k("s_waitcnt lgkmcnt(0)")
    k("s_barrier")
    for o in outs:
        pool.free_n(o, 2)
    vq = pool.alloc()
    vkb = pool.alloc()
    k(f"v_and_b32 v{vq}, 3, v0")
    k(f"v_lshrrev_b32 v{vkb}, 2, v0")
    vqb = pool.alloc()
    k(f"v_lshlrev_b32 v{vqb}, 12, v{vq}")
    vg = pool.alloc()
    k(f"v_lshlrev_b32 v{vg}, 4, v{vq}")
    k("s_lshl_b32 s17, s2, 6")
    k(f"v_add_u32 v{vg}, s17, v{vg}")
    k(f"v_lshl_add_u32 v{vg}, v{vkb}, 14, v{vg}")
    half = fhex(0.5)

    def unpack_store(kreg, it_off_g, guard=None):
        za = pool.alloc_n(2, 2)
        zm = pool.alloc_n(2, 2)
        ad = pool.alloc()
        am = pool.alloc()
        k(f"v_lshl_add_u32 v{ad}, v{kreg}, 3, v{vqb}")
        k(f"v_sub_u32 v{am}, 512, v{kreg}")
        k(f"v_and_b32 v{am}, 511, v{am}")
        k(f"v_lshl_add_u32 v{am}, v{am}, 3, v{vqb}")
        k(f"ds_read_b64 v[{za}:{za+1}], v{ad}")
        k(f"ds_read_b64 v[{zm}:{zm+1}], v{am}")
        o = pool.alloc_n(4, 4)
        k("s_waitcnt lgkmcnt(0)")
        k(f"v_add_f32 v{o}, v{za}, v{zm}")
        k(f"v_sub_f32 v{o+1}, v{za+1}, v{zm+1}")
        k(f"v_add_f32 v{o+2}, v{za+1}, v{zm+1}")
        k(f"v_sub_f32 v{o+3}, v{zm}, v{za}")
        for i in range(4):
            k(f"v_mul_f32 v{o+i}, 0.5, v{o+i}")
        return o, [za, zm, ad, am]

    for it in range(4):
        kr = pool.alloc()
        k(f"v_add_u32 v{kr}, {64*it}, v{vkb}")
        o, tmp = unpack_store(kr, 0)
        k(f"s_mov_b32 s18, {YT_OFF + it*64*16384}")
        k(f"buffer_store_dwordx4 v[{o}:{o+3}], v{vg}, s[12:15], s18 offen")
        pool.free(kr)
        pool.free_n(tmp[0], 2)
        pool.free_n(tmp[1], 2)
        pool.free(tmp[2])
        pool.free(tmp[3])
        pool.free_n(o, 4)
    k("v_cmp_gt_u32 vcc, 4, v0")
    k("s_and_saveexec_b64 s[20:21], vcc")
    k("s_cbranch_execz Lskip256_k1")
    kr = pool.alloc()
    k(f"v_mov_b32 v{kr}, 256")
    o, tmp = unpack_store(kr, 0)
    vg2 = pool.alloc()
    k(f"v_lshlrev_b32 v{vg2}, 4, v{vq}")
    k(f"v_add_u32 v{vg2}, s17, v{vg2}")
    k(f"s_mov_b32 s18, {YT_OFF + 256*16384}")
    k(f"buffer_store_dwordx4 v[{o}:{o+3}], v{vg2}, s[12:15], s18 offen")
    k.label("Lskip256_k1")
    k("s_endpgm")
    k.label("Ltrans_k1")
    k(f"s_cmp_ge_u32 s2, {NWG_FFT1 + NT_W}")
    k("s_cbranch_scc1 Ltrans2_k1")
    srd(k, 36, 28, 2048 * 257 * 2)
    srd(k, 40, 30, 2048 * 257 * 2)
    gen_transpose_role(k, "w", NWG_FFT1, 32, 5, [36, 40], 514, 257, WT_OFF, 2048, 257, True)
    k.label("Ltrans2_k1")
    k(f"s_cmp_ge_u32 s2, {NWG_FFT1 + NT_W + NT_W1}")
    k("s_cbranch_scc1 Ltrans3_k1")
    srd(k, 36, 32, D * F * 2)
    gen_transpose_role(k, "w1", NWG_FFT1 + NT_W, 8, 22, [36], F * 2, F, W1T_OFF, D, FP, False)
    k.label("Ltrans3_k1")
    srd(k, 36, 34, F * D * 2)
    gen_transpose_role(k, "w2", NWG_FFT1 + NT_W + NT_W1, 22, 8, [36], D * 2, D, W2T_OFF, FP, D, False)
    k.label("Lend_k1")
    k("s_endpgm")
    return k, 128, 104, 16384 + 1024


K2_WGS = 257


def gen_k2():
    k = Kern("k2")
    k(f"s_cmp_ge_u32 s2, {K2_WGS}")
    k("s_cbranch_scc1 Lend_k2")
    k(f"s_load_dwordx2 s[6:7], s[0:1], {KA_WS}")
    k("s_waitcnt lgkmcnt(0)")
    srd(k, 12, 6, WS_BYTES)
    pool = Pool(range(8, 200))
    fb = FFTB(k, pool, "s16")
    k(f"s_mov_b32 s16, {fhex(math.sqrt(0.5))}")
    k("s_lshl_b32 s17, s2, 14")
    k("v_lshlrev_b32 v1, 3, v0")
    k("v_add_u32 v1, s17, v1")
    ins = [pool.alloc_n(2, 2) for _ in range(8)]
    for m in range(8):
        k(f"s_mov_b32 s18, {YT_OFF + 2048*m}")
        k(f"buffer_load_dwordx2 v[{ins[m]}:{ins[m]+1}], v1, s[12:15], s18 offen")
    wv = [pool.alloc() for _ in range(8)]
    k("s_lshl_b32 s17, s2, 13")
    k("v_lshlrev_b32 v2, 2, v0")
    k("v_add_u32 v2, s17, v2")
    for m in range(8):
        k(f"s_mov_b32 s19, {WT_OFF + 1024*m}")
        k(f"buffer_load_dword v{wv[m]}, v2, s[12:15], s19 offen")
    k("v_lshlrev_b32 v3, 3, v0")
    k("s_waitcnt vmcnt(8)")
    x = [(ins[m], ins[m] + 1) for m in range(8)]
    LDSB = [0, 16384]

    def fft2048(x, inv, first_buf):
        sg = 1.0 if inv else -1.0
        buf = first_buf
        vw = pool.alloc()
        vk = pool.alloc()
        outs = [pool.alloc_n(2, 2) for _ in range(8)]
        fb.radix8(x, inv, [(o, o + 1) for o in outs])
        k(f"v_lshlrev_b32 v{vw}, 6, v0")
        for r in range(8):
            k(f"ds_write_b64 v{vw}, v[{outs[r]}:{outs[r]+1}] offset:{LDSB[buf] + 8*r}")
        k("s_waitcnt lgkmcnt(0)")
        k("s_barrier")
        for r in range(8):
            k(f"ds_read_b64 v[{outs[r]}:{outs[r]+1}], v3 offset:{LDSB[buf] + 2048*r}")
        k("s_waitcnt lgkmcnt(0)")
        x = [(o, o + 1) for o in outs]
        buf ^= 1
        for Ns in (8, 64):
            k(f"v_and_b32 v{vk}, {Ns-1}, v0")
            x = fb.twiddle(x, vk, sg / (Ns * 8), 8)
            outs = [pool.alloc_n(2, 2) for _ in range(8)]
            fb.radix8(x, inv, [(o, o + 1) for o in outs])
            lg = Ns.bit_length() - 1
            k(f"v_lshrrev_b32 v{vw}, {lg}, v0")
            k(f"v_lshlrev_b32 v{vw}, {lg+3+3}, v{vw}")
            k(f"v_lshl_add_u32 v{vw}, v{vk}, 3, v{vw}")
            for r in range(8):
                k(f"ds_write_b64 v{vw}, v[{outs[r]}:{outs[r]+1}] offset:{LDSB[buf] + 8*Ns*r}")
            k("s_waitcnt lgkmcnt(0)")
            k("s_barrier")
            for r in range(8):
                k(f"ds_read_b64 v[{outs[r]}:{outs[r]+1}], v3 offset:{LDSB[buf] + 2048*r}")
            k("s_waitcnt lgkmcnt(0)")
            x = [(o, o + 1) for o in outs]
            buf ^= 1
        res = [None] * 8
        for h in range(2):
            xx = [x[2 * r + h] for r in range(4)]
            if h == 0:
                k(f"v_mov_b32 v{vk}, v0")
            else:
                k(f"v_add_u32 v{vk}, 256, v0")
            xx = fb.twiddle(xx, vk, sg / 2048.0, 4)
            Y = fb.radix4(xx, inv)
            for r in range(4):
                res[2 * r + h] = Y[r]
        pool.free(vw)
        pool.free(vk)
        return res, buf

    X, buf = fft2048(x, False, 0)
    k("s_waitcnt vmcnt(0)")
    sc = fhex(1.0 / (2048.0 * 512.0))
    for m in range(8):
        c = pool.alloc()
        s_ = pool.alloc()
        k(f"v_lshlrev_b32 v{c}, 16, v{wv[m]}")
        k(f"v_and_b32 v{s_}, 0xffff0000, v{wv[m]}")
        k(f"v_mul_f32 v{c}, {sc}, v{c}")
        k(f"v_mul_f32 v{s_}, {sc}, v{s_}")
        X[m] = fb.cmul(X[m], c, s_)
        pool.free(c)
        pool.free(s_)
    pool.free(wv)
    Z, buf = fft2048(X, True, buf)
    for m in range(8):
        o = pool.alloc_n(2, 2)
        k(f"v_mov_b32 v{o}, v{Z[m][0]}")
        k(f"v_mov_b32 v{o+1}, v{Z[m][1]}")
        k(f"s_mov_b32 s18, {ZT_OFF + 2048*m}")
        k(f"buffer_store_dwordx2 v[{o}:{o+1}], v1, s[12:15], s18 offen")
    k.label("Lend_k2")
    k("s_endpgm")
    return k, 200, 104, 32768


K4_WGS = 256


def gen_k4():
    k = Kern("k4")
    k(f"s_cmp_ge_u32 s2, {K4_WGS}")
    k("s_cbranch_scc1 Lend_k4")
    k(f"s_load_dwordx2 s[4:5], s[0:1], {KA_X}")
    k(f"s_load_dwordx2 s[6:7], s[0:1], {KA_WS}")
    k(f"s_load_dwordx2 s[28:29], s[0:1], {KA_OUT}")
    k("s_waitcnt lgkmcnt(0)")
    srd(k, 8, 4, S * D * 2)
    srd(k, 12, 6, WS_BYTES)
    srd(k, 32, 28, S * D * 2)
    pool = Pool(range(8, 160))
    fb = FFTB(k, pool, "s16")
    k(f"s_mov_b32 s16, {fhex(math.sqrt(0.5))}")
    AB_STRIDE = 4352
    k("v_and_b32 v1, 63, v0")
    k("v_lshrrev_b32 v2, 6, v0")
    vq = pool.alloc()
    vkb = pool.alloc()
    k(f"v_and_b32 v{vq}, 3, v0")
    k(f"v_lshrrev_b32 v{vkb}, 2, v0")
    vg = pool.alloc()
    k(f"v_lshlrev_b32 v{vg}, 4, v{vq}")
    k("s_lshl_b32 s17, s2, 6")
    k(f"v_add_u32 v{vg}, s17, v{vg}")
    vg2 = pool.alloc()
    k(f"v_mov_b32 v{vg2}, v{vg}")
    k(f"v_lshl_add_u32 v{vg}, v{vkb}, 14, v{vg}")
    ld = [pool.alloc_n(4, 4) for _ in range(4)]
    for it in range(4):
        k(f"s_mov_b32 s18, {ZT_OFF + it*64*16384}")
        k(f"buffer_load_dwordx4 v[{ld[it]}:{ld[it]+3}], v{vg}, s[12:15], s18 offen")
    l256 = pool.alloc_n(4, 4)
    k(f"s_mov_b32 s18, {ZT_OFF + 256*16384}")
    k(f"buffer_load_dwordx4 v[{l256}:{l256+3}], v{vg2}, s[12:15], s18 offen")
    vl = pool.alloc()
    k(f"v_mul_u32_u24 v{vl}, {AB_STRIDE}, v{vq}")
    vl2 = pool.alloc()
    k(f"v_add_u32 v{vl2}, {256*16}, v{vl}")
    k(f"v_lshl_add_u32 v{vl}, v{vkb}, 4, v{vl}")
    k("s_waitcnt vmcnt(0)")
    k(f"v_cmp_eq_u32 vcc, 0, v{vkb}")
    k(f"v_cndmask_b32 v{ld[0]+1}, v{ld[0]+1}, 0, vcc")
    k(f"v_cndmask_b32 v{ld[0]+3}, v{ld[0]+3}, 0, vcc")
    k(f"v_mov_b32 v{l256+1}, 0")
    k(f"v_mov_b32 v{l256+3}, 0")
    for it in range(4):
        k(f"ds_write_b128 v{vl}, v[{ld[it]}:{ld[it]+3}] offset:{it*1024}")
    k(f"ds_write_b128 v{vl2}, v[{l256}:{l256+3}]")
    k("s_waitcnt lgkmcnt(0)")
    k("s_barrier")
    for r_ in ld:
        pool.free_n(r_, 4)
    pool.free_n(l256, 4)
    pool.free([vq, vkb, vg, vg2, vl, vl2])
    vab = pool.alloc()
    k(f"v_mul_u32_u24 v{vab}, {AB_STRIDE}, v2")
    x = []
    tmp4 = [pool.alloc_n(4, 4) for _ in range(8)]
    for j in range(8):
        ad = pool.alloc()
        if j < 4:
            k(f"v_add_u32 v{ad}, {64*j}, v1")
        else:
            k(f"v_sub_u32 v{ad}, {512-64*j}, v1")
        k(f"v_lshl_add_u32 v{ad}, v{ad}, 4, v{vab}")
        k(f"ds_read_b128 v[{tmp4[j]}:{tmp4[j]+3}], v{ad}")
        pool.free(ad)
    k("s_waitcnt lgkmcnt(0)")
    for j in range(8):
        o = tmp4[j]
        re = pool.alloc()
        im = pool.alloc()
        if j < 4:
            k(f"v_sub_f32 v{re}, v{o}, v{o+3}")
            k(f"v_add_f32 v{im}, v{o+1}, v{o+2}")
        else:
            k(f"v_add_f32 v{re}, v{o}, v{o+3}")
            k(f"v_sub_f32 v{im}, v{o+2}, v{o+1}")
        x.append((re, im))
    for o in tmp4:
        pool.free_n(o, 4)
    vrd = pool.alloc()
    k(f"v_lshl_add_u32 v{vrd}, v1, 3, v{vab}")
    vw = pool.alloc()
    vk = pool.alloc()
    outs = [pool.alloc_n(2, 2) for _ in range(8)]
    fb.radix8(x, True, [(o, o + 1) for o in outs])
    k(f"v_lshl_add_u32 v{vw}, v1, 6, v{vab}")
    k("s_waitcnt lgkmcnt(0)")
    for r in range(8):
        k(f"ds_write_b64 v{vw}, v[{outs[r]}:{outs[r]+1}] offset:{8*r}")
    k("s_waitcnt lgkmcnt(0)")
    for r in range(8):
        k(f"ds_read_b64 v[{outs[r]}:{outs[r]+1}], v{vrd} offset:{512*r}")
    k("s_waitcnt lgkmcnt(0)")
    x = [(o, o + 1) for o in outs]
    k(f"v_and_b32 v{vk}, 7, v1")
    x = fb.twiddle(x, vk, 1.0 / 64, 8)
    outs = [pool.alloc_n(2, 2) for _ in range(8)]
    fb.radix8(x, True, [(o, o + 1) for o in outs])
    k(f"v_lshrrev_b32 v{vw}, 3, v1")
    k(f"v_lshl_add_u32 v{vw}, v{vw}, 9, v{vab}")
    k(f"v_lshl_add_u32 v{vw}, v{vk}, 3, v{vw}")
    for r in range(8):
        k(f"ds_write_b64 v{vw}, v[{outs[r]}:{outs[r]+1}] offset:{64*r}")
    k("s_waitcnt lgkmcnt(0)")
    for r in range(8):
        k(f"ds_read_b64 v[{outs[r]}:{outs[r]+1}], v{vrd} offset:{512*r}")
    k("s_waitcnt lgkmcnt(0)")
    x = [(o, o + 1) for o in outs]
    x = fb.twiddle(x, 1, 1.0 / 512, 8)
    z = fb.radix8(x, True)
    k("s_lshl_b32 s17, s2, 13")
    k("v_lshlrev_b32 v3, 11, v2")
    k("v_lshl_add_u32 v3, v1, 1, v3")
    k("v_add_u32 v3, s17, v3")
    xa = [pool.alloc() for _ in range(8)]
    xb = [pool.alloc() for _ in range(8)]
    ga = [pool.alloc() for _ in range(8)]
    gb = [pool.alloc() for _ in range(8)]
    k(f"s_mov_b32 s18, {G_OFF}")
    for j in range(8):
        k(f"buffer_load_ushort v{xa[j]}, v3, s[8:11], 0 offen offset:{128*j}")
        k(f"buffer_load_ushort v{xb[j]}, v3, s[8:11], 0 offen offset:{1024+128*j}")
        k(f"buffer_load_ushort v{ga[j]}, v3, s[12:15], s18 offen offset:{128*j}")
        k(f"buffer_load_ushort v{gb[j]}, v3, s[12:15], s18 offen offset:{1024+128*j}")
    k("s_waitcnt vmcnt(0)")
    for j in range(8):
        sa, sb = z[j]
        bf16_round_pair(k, pool, sa, sb)
        k(f"v_lshlrev_b32 v{ga[j]}, 16, v{ga[j]}")
        k(f"v_lshlrev_b32 v{gb[j]}, 16, v{gb[j]}")
        k(f"v_lshlrev_b32 v{xa[j]}, 16, v{xa[j]}")
        k(f"v_lshlrev_b32 v{xb[j]}, 16, v{xb[j]}")
        k(f"v_mul_f32 v{sa}, v{sa}, v{ga[j]}")
        k(f"v_mul_f32 v{sb}, v{sb}, v{gb[j]}")
        bf16_round_pair(k, pool, sa, sb)
        k(f"v_add_f32 v{sa}, v{sa}, v{xa[j]}")
        k(f"v_add_f32 v{sb}, v{sb}, v{xb[j]}")
        k(f"v_cvt_pk_bf16_f32 v{xa[j]}, v{sa}, v{sb}")
        k(f"buffer_store_short v{xa[j]}, v3, s[32:35], 0 offen offset:{128*j}")
        k(f"buffer_store_short_d16_hi v{xa[j]}, v3, s[32:35], 0 offen offset:{1024+128*j}")
    k.label("Lend_k4")
    k("s_endpgm")
    return k, 160, 104, 4 * AB_STRIDE


def gen_gemm(name, A_off, lda, B_off, ldb, C_off, ldc, Kdim, MT, NT):
    k = Kern(name)
    NWG = MT * NT
    NK = Kdim // 64
    assert NK % 2 == 0
    k(f"s_cmp_ge_u32 s2, {NWG}")
    k(f"s_cbranch_scc1 Lend_{name}")
    k(f"s_load_dwordx2 s[6:7], s[0:1], {KA_WS}")
    k("s_waitcnt lgkmcnt(0)")
    srd(k, 12, 6, WS_BYTES)
    lg = MT.bit_length() - 1
    k(f"s_and_b32 s20, s2, {MT-1}")
    k(f"s_lshr_b32 s21, s2, {lg}")
    PITCH = 144
    TILE_B = 128 * PITCH
    BUF = [0, 2 * TILE_B]
    k("v_lshrrev_b32 v1, 3, v0")
    k("v_and_b32 v2, 7, v0")
    k(f"s_mul_i32 s22, s20, {128*lda*2}")
    k(f"s_mul_i32 s23, s21, {128*ldb*2}")
    k(f"s_mov_b32 s24, {lda*2}")
    k(f"s_mov_b32 s25, {ldb*2}")
    k("v_mul_lo_u32 v3, v1, s24")
    k("v_lshl_add_u32 v3, v2, 4, v3")
    k("v_add_u32 v3, s22, v3")
    k("v_mul_lo_u32 v4, v1, s25")
    k("v_lshl_add_u32 v4, v2, 4, v4")
    k("v_add_u32 v4, s23, v4")
    k(f"v_mul_u32_u24 v5, {PITCH}, v1")
    k("v_lshl_add_u32 v5, v2, 4, v5")
    k("v_lshrrev_b32 v6, 6, v0")
    k("v_and_b32 v7, 63, v0")
    k("v_and_b32 v8, 31, v7")
    k("v_lshrrev_b32 v9, 5, v7")
    k("v_and_b32 v10, 1, v6")
    k("v_lshrrev_b32 v11, 1, v6")
    k("v_lshl_add_u32 v12, v10, 6, v8")
    k(f"v_mul_u32_u24 v12, {PITCH}, v12")
    k("v_lshl_add_u32 v12, v9, 4, v12")
    k("v_lshl_add_u32 v13, v11, 6, v8")
    k(f"v_mul_u32_u24 v13, {PITCH}, v13")
    k("v_lshl_add_u32 v13, v9, 4, v13")
    k(f"v_add_u32 v13, {TILE_B}, v13")
    k(f"v_add_u32 v144, {BUF[1]}, v5")
    k(f"v_add_u32 v145, {BUF[1]}, v12")
    k(f"v_add_u32 v146, {BUF[1]}, v13")
    G = 16
    FR = 48
    ACC = 80
    for i in range(64):
        k(f"v_mov_b32 v{ACC+i}, 0")
    def issue_loads(ktile):
        for i in range(4):
            k(f"s_mov_b32 s26, {A_off + i*32*lda*2 + ktile*128}")
            k(f"buffer_load_dwordx4 v[{G+4*i}:{G+4*i+3}], v3, s[12:15], s26 offen")
        for i in range(4):
            k(f"s_mov_b32 s26, {B_off + i*32*ldb*2 + ktile*128}")
            k(f"buffer_load_dwordx4 v[{G+16+4*i}:{G+16+4*i+3}], v4, s[12:15], s26 offen")

    def write_lds(buf):
        av = 5 if buf == 0 else 144
        for i in range(4):
            k(f"ds_write_b128 v{av}, v[{G+4*i}:{G+4*i+3}] offset:{i*32*PITCH}")
        for i in range(4):
            k(f"ds_write_b128 v{av}, v[{G+16+4*i}:{G+16+4*i+3}] offset:{TILE_B + i*32*PITCH}")

    def read_frags(buf, ks, fs):
        f = FR + 16 * fs
        va = 12 if buf == 0 else 145
        vb = 13 if buf == 0 else 146
        for i in range(2):
            k(f"ds_read_b128 v[{f+4*i}:{f+4*i+3}], v{va} offset:{i*32*PITCH + ks*32}")
        for j in range(2):
            k(f"ds_read_b128 v[{f+8+4*j}:{f+8+4*j+3}], v{vb} offset:{j*32*PITCH + ks*32}")

    def compute(buf):
        read_frags(buf, 0, 0)
        for ks in range(4):
            if ks < 3:
                read_frags(buf, ks + 1, (ks + 1) % 2)
                k("s_waitcnt lgkmcnt(4)")
            else:
                k("s_waitcnt lgkmcnt(0)")
            f = FR + 16 * (ks % 2)
            for i in range(2):
                for j in range(2):
                    acc = ACC + 16 * (2 * i + j)
                    k(f"v_mfma_f32_32x32x16_bf16 v[{acc}:{acc+15}], v[{f+8+4*j}:{f+8+4*j+3}], "
                      f"v[{f+4*i}:{f+4*i+3}], v[{acc}:{acc+15}]")

    issue_loads(0)
    k("s_waitcnt vmcnt(0)")
    write_lds(0)
    issue_loads(1)
    k("s_waitcnt lgkmcnt(0)")
    k("s_barrier")
    for it in range(NK):
        buf = it % 2
        compute(buf)
        if it + 1 < NK:
            k("s_waitcnt vmcnt(0)")
            write_lds(buf ^ 1)
            if it + 2 < NK:
                issue_loads(it + 2)
            k("s_waitcnt lgkmcnt(0)")
            k("s_barrier")
    k("v_lshl_add_u32 v14, v10, 6, v8")
    k("s_lshl_b32 s22, s20, 7")
    k("v_add_u32 v14, s22, v14")
    k(f"s_mov_b32 s24, {ldc*2}")
    k("v_mul_lo_u32 v14, v14, s24")
    k("v_lshlrev_b32 v15, 6, v11")
    k("v_lshl_add_u32 v15, v9, 2, v15")
    k("s_lshl_b32 s23, s21, 7")
    k("v_add_u32 v15, s23, v15")
    k("v_lshl_add_u32 v14, v15, 1, v14")
    k(f"s_mov_b32 s27, {fhex(-1.4426950408889634)}")
    T = 16
    for i in range(2):
        for j in range(2):
            acc = ACC + 16 * (2 * i + j)
            for g in range(4):
                vals = [acc + 4 * g + q for q in range(4)]
                for p in range(2):
                    a_, b_ = vals[2 * p], vals[2 * p + 1]
                    t = T + p
                    k(f"v_cvt_pk_bf16_f32 v{t}, v{a_}, v{b_}")
                    k(f"v_lshlrev_b32 v{T+4+2*p}, 16, v{t}")
                    k(f"v_and_b32 v{T+5+2*p}, 0xffff0000, v{t}")
                for q in range(4):
                    x_ = T + 4 + q
                    e_ = T + 8 + q
                    k(f"v_mul_f32 v{e_}, s27, v{x_}")
                    k(f"v_exp_f32 v{e_}, v{e_}")
                for q in range(4):
                    e_ = T + 8 + q
                    k(f"v_add_f32 v{e_}, 1.0, v{e_}")
                    k(f"v_rcp_f32 v{e_}, v{e_}")
                for q in range(4):
                    x_ = T + 4 + q
                    e_ = T + 8 + q
                    k(f"v_mul_f32 v{x_}, v{x_}, v{e_}")
                o = T + 12 + 2 * ((4 * (2 * i + j) + g) % 2)
                k(f"v_cvt_pk_bf16_f32 v{o}, v{T+4}, v{T+5}")
                k(f"v_cvt_pk_bf16_f32 v{o+1}, v{T+6}, v{T+7}")
                off = C_off + i * 32 * ldc * 2 + (j * 32 + 8 * g) * 2
                k(f"s_mov_b32 s26, {off}")
                k(f"buffer_store_dwordx2 v[{o}:{o+1}], v14, s[12:15], s26 offen")
    k.label(f"Lend_{name}")
    k("s_endpgm")
    return k, 148, 104, 4 * TILE_B


def build(launch_sel=None):
    kernels = []
    k1 = gen_k1()
    k2 = gen_k2()
    g1 = gen_gemm("g1", XN_OFF, D, W1T_OFF, D, H_OFF, FP, D, 16, 11)
    g2 = gen_gemm("g2", H_OFF, FP, W2T_OFF, FP, G_OFF, D, FP, 16, 4)
    k4 = gen_k4()
    launches = [
        ("k1_kernel", k1, K1_WGS, 256),
        ("k2_kernel", k2, K2_WGS, 256),
        ("g1_kernel", g1, 16 * 11, 256),
        ("g2_kernel", g2, 16 * 4, 256),
        ("k4_kernel", k4, K4_WGS, 256),
    ]
    hdr = open("recurrent_scan__spectral_gfnet__dense_activation_silu__prompt.s.ref").read()
    hdr_lines = []
    for line in hdr.split("\n"):
        if line.startswith(";") and "@launch" not in line:
            hdr_lines.append(line)
        elif not line.startswith(";"):
            break
    out = hdr_lines[:]
    for name, kk, grid, block in launches:
        out.append(f"; @launch kernel={name} grid=({grid},1,1) block=({block},1,1) lds={kk[3]}")
    out.append('.amdgcn_target "amdgcn-amd-amdhsa--gfx950"')
    out.append(".text")
    for name, kk, grid, block in launches:
        k, nv, ns, lds = kk
        out.append(f".globl {name}")
        out.append(".p2align 8")
        out.append(f".type {name},@function")
        out.append(f"{name}:")
        out.append(k.finalize())
    out.append('.section .rodata,"a"')
    for name, kk, grid, block in launches:
        k, nv, ns, lds = kk
        acc = (nv + 3) // 4 * 4
        out.append(".p2align 6")
        out.append(f".amdhsa_kernel {name}")
        out.append(f"  .amdhsa_next_free_vgpr {nv}")
        out.append(f"  .amdhsa_next_free_sgpr 102")
        out.append(f"  .amdhsa_accum_offset {acc}")
        out.append("  .amdhsa_group_segment_fixed_size 0")
        out.append("  .amdhsa_kernarg_size 72")
        out.append("  .amdhsa_user_sgpr_count 2")
        out.append("  .amdhsa_user_sgpr_kernarg_segment_ptr 1")
        out.append("  .amdhsa_system_sgpr_workgroup_id_x 1")
        out.append(".end_amdhsa_kernel")
    return "\n".join(out) + "\n"


if __name__ == "__main__":
    txt = build()
    path = sys.argv[1] if len(sys.argv) > 1 else "recurrent_scan__spectral_gfnet__dense_activation_silu__prompt.s"
    open(path, "w").write(txt)
    print("wrote", path, len(txt))
```

```python
from asmlib import Kern, fhex
from gen import srd, KA_WS, WS_BYTES


def gen_gemm2(name, A_off, lda, Bsrd_ptr_ka, ldb, C_off, ldc, Kdim, MT, NT, BM=128, BN=128, NS=4,
              b_bytes=None):
    k = Kern(name)
    NWG = MT * NT
    NKT = Kdim // 32
    WMW = 2 if BM == 128 else 1
    WNW = 4 // WMW
    TMI = BM // WMW // 32
    TNJ = BN // WNW // 32
    A_BYTES = BM * 64
    B_BYTES = 32 * BN * 2
    STAGE = A_BYTES + B_BYTES
    nda = BM // 64
    ndb = BN // 64
    nd = nda + ndb
    k(f"s_cmp_ge_u32 s2, {NWG}")
    k(f"s_cbranch_scc1 Lend_{name}")
    k(f"s_load_dwordx2 s[6:7], s[0:1], {KA_WS}")
    k(f"s_load_dwordx2 s[4:5], s[0:1], {Bsrd_ptr_ka}")
    k("s_waitcnt lgkmcnt(0)")
    srd(k, 12, 6, WS_BYTES)
    srd(k, 8, 4, b_bytes)
    lg = MT.bit_length() - 1
    k(f"s_and_b32 s20, s2, {MT-1}")
    k(f"s_lshr_b32 s21, s2, {lg}")
    k("v_lshrrev_b32 v1, 6, v0")
    k("v_and_b32 v2, 63, v0")
    k("v_readfirstlane_b32 s30, v1")
    k("v_lshrrev_b32 v3, 2, v2")
    k("v_and_b32 v4, 3, v2")
    k("v_bfe_u32 v5, v2, 4, 2")
    k("v_xor_b32 v4, v4, v5")
    k(f"s_mov_b32 s24, {lda*2}")
    k(f"s_mul_i32 s22, s20, {BM*lda*2}")
    k(f"s_mul_i32 s25, s30, {nda*16*lda*2}")
    k("s_add_u32 s22, s22, s25")
    vA = [10 + q for q in range(nda)]
    for q in range(nda):
        k(f"v_add_u32 v6, {16*q}, v3")
        k("v_mul_lo_u32 v6, v6, s24")
        k("v_lshl_add_u32 v6, v4, 4, v6")
        k(f"v_add_u32 v{vA[q]}, s22, v6")
    rpi = 1024 // (BN * 2)
    cpr = BN * 2 // 16
    lgc = cpr.bit_length() - 1
    k(f"v_lshrrev_b32 v3, {lgc}, v2")
    k(f"v_and_b32 v4, {cpr-1}, v2")
    k("v_and_b32 v5, 3, v3")
    k("v_lshlrev_b32 v5, 2, v5")
    k("v_xor_b32 v4, v4, v5")
    k(f"s_mov_b32 s24, {ldb*2}")
    k(f"s_mul_i32 s23, s21, {BN*2}")
    k(f"s_mul_i32 s25, s30, {ndb*rpi*ldb*2}")
    k("s_add_u32 s23, s23, s25")
    vB = [12 + q for q in range(ndb)]
    for q in range(ndb):
        k(f"v_add_u32 v6, {rpi*q}, v3")
        k("v_mul_lo_u32 v6, v6, s24")
        k("v_lshl_add_u32 v6, v4, 4, v6")
        k(f"v_add_u32 v{vB[q]}, s23, v6")
    k(f"s_mul_i32 s31, s30, {nda*1024}")
    k(f"s_mul_i32 s32, s30, {ndb*1024}")
    k(f"s_add_u32 s32, s32, {A_BYTES}")
    if WMW == 2:
        k("v_and_b32 v3, 1, v1")
        k("v_lshrrev_b32 v4, 1, v1")
    else:
        k("v_mov_b32 v3, 0")
        k("v_mov_b32 v4, v1")
    k("v_and_b32 v5, 31, v2")
    k("v_lshrrev_b32 v6, 5, v2")
    k(f"v_mul_u32_u24 v7, {BM//WMW}, v3")
    k("v_add_u32 v7, v7, v5")
    k("v_lshlrev_b32 v7, 6, v7")
    k("v_bfe_u32 v8, v5, 2, 2")
    vFA = [14, 15]
    for ks in range(2):
        k(f"v_add_u32 v9, {2*ks}, v6")
        k("v_xor_b32 v9, v9, v8")
        k(f"v_lshl_add_u32 v{vFA[ks]}, v9, 4, v7")
    k("v_bfe_u32 v7, v2, 2, 2")
    k("v_lshl_add_u32 v8, v6, 3, v7")
    k(f"v_lshlrev_b32 v8, {lgc+4}, v8")
    k("v_bfe_u32 v9, v2, 4, 1")
    k("v_lshl_add_u32 v8, v9, 5, v8")
    k("v_and_b32 v9, 3, v2")
    k("v_lshl_add_u32 v8, v9, 3, v8")
    k(f"v_add_u32 v8, {A_BYTES}, v8")
    vFB = [16 + j for j in range(TNJ)]
    for j in range(TNJ):
        k(f"v_mul_u32_u24 v9, {TNJ}, v4")
        k(f"v_add_u32 v9, {j}, v9")
        k("v_xor_b32 v9, v9, v7")
        k(f"v_lshl_add_u32 v{vFB[j]}, v9, 6, v8")
    FR = 24
    fsz = 4 * (TMI + TNJ)
    ACC = FR + 2 * fsz
    ACC = (ACC + 3) // 4 * 4
    nacc = 16 * TMI * TNJ
    for i in range(nacc):
        k(f"v_mov_b32 v{ACC+i}, 0")

    def dma(stage):
        slot = stage % NS
        for q in range(nda):
            k(f"s_add_u32 m0, s31, {slot*STAGE + q*1024}")
            k(f"s_mov_b32 s26, {A_off + stage*64}")
            k(f"buffer_load_dwordx4 v{vA[q]}, s[12:15], s26 offen lds")
        for q in range(ndb):
            k(f"s_add_u32 m0, s32, {slot*STAGE + q*1024}")
            k(f"s_mov_b32 s26, {stage*32*ldb*2}")
            k(f"buffer_load_dwordx4 v{vB[q]}, s[8:11], s26 offen lds")

    def read_frags(slot, ks, fs):
        f = FR + fs * fsz
        for i in range(TMI):
            k(f"ds_read_b128 v[{f+4*i}:{f+4*i+3}], v{vFA[ks]} offset:{slot*STAGE + i*32*64}")
        for j in range(TNJ):
            for h in range(2):
                r = f + 4 * TMI + 4 * j + 2 * h
                k(f"ds_read_b64_tr_b16 v[{r}:{r+1}], v{vFB[j]} offset:{slot*STAGE + (16*ks+4*h)*BN*2}")

    nrd = TMI + 2 * TNJ
    for s_ in range(min(NS - 1, NKT)):
        dma(s_)
    for it in range(NKT):
        rem = min(NS - 2, NKT - 1 - it)
        k(f"s_waitcnt vmcnt({rem*nd})")
        k("s_barrier")
        if it + NS - 1 < NKT:
            dma(it + NS - 1)
        slot = it % NS
        read_frags(slot, 0, 0)
        read_frags(slot, 1, 1)
        for ks in range(2):
            k(f"s_waitcnt lgkmcnt({nrd if ks == 0 else 0})")
            f = FR + ks * fsz
            for i in range(TMI):
                for j in range(TNJ):
                    acc = ACC + 16 * (i * TNJ + j)
                    k(f"v_mfma_f32_32x32x16_bf16 v[{acc}:{acc+15}], v[{f+4*TMI+4*j}:{f+4*TMI+4*j+3}], "
                      f"v[{f+4*i}:{f+4*i+3}], v[{acc}:{acc+15}]")
    k(f"v_mul_u32_u24 v7, {BM//WMW}, v3")
    k("v_add_u32 v7, v7, v5")
    k(f"s_mul_i32 s22, s20, {BM}")
    k("v_add_u32 v7, s22, v7")
    k(f"s_mov_b32 s24, {ldc*2}")
    k("v_mul_lo_u32 v7, v7, s24")
    k(f"v_mul_u32_u24 v8, {BN//WNW}, v4")
    k("v_lshl_add_u32 v8, v6, 2, v8")
    k(f"s_mul_i32 s23, s21, {BN}")
    k("v_add_u32 v8, s23, v8")
    k("v_lshl_add_u32 v7, v8, 1, v7")
    k(f"s_mov_b32 s27, {fhex(-1.4426950408889634)}")
    T = FR
    cnt = 0
    for i in range(TMI):
        for j in range(TNJ):
            acc = ACC + 16 * (i * TNJ + j)
            for g in range(4):
                vals = [acc + 4 * g + q for q in range(4)]
                for p in range(2):
                    t = T + p
                    k(f"v_cvt_pk_bf16_f32 v{t}, v{vals[2*p]}, v{vals[2*p+1]}")
                    k(f"v_lshlrev_b32 v{T+4+2*p}, 16, v{t}")
                    k(f"v_and_b32 v{T+5+2*p}, 0xffff0000, v{t}")
                for q in range(4):
                    k(f"v_mul_f32 v{T+8+q}, s27, v{T+4+q}")
                    k(f"v_exp_f32 v{T+8+q}, v{T+8+q}")
                for q in range(4):
                    k(f"v_add_f32 v{T+8+q}, 1.0, v{T+8+q}")
                    k(f"v_rcp_f32 v{T+8+q}, v{T+8+q}")
                for q in range(4):
                    k(f"v_mul_f32 v{T+4+q}, v{T+4+q}, v{T+8+q}")
                o = T + 12 + 2 * (cnt % 2)
                cnt += 1
                k(f"v_cvt_pk_bf16_f32 v{o}, v{T+4}, v{T+5}")
                k(f"v_cvt_pk_bf16_f32 v{o+1}, v{T+6}, v{T+7}")
                off = C_off + i * 32 * ldc * 2 + (j * 32 + 8 * g) * 2
                k(f"s_mov_b32 s26, {off}")
                k(f"buffer_store_dwordx2 v[{o}:{o+1}], v7, s[12:15], s26 offen")
    k.label(f"Lend_{name}")
    k("s_endpgm")
    nv = ACC + nacc
    return k, nv, 104, NS * STAGE
```

```python
import math
import sys
from asmlib import Kern, Pool, fhex
from fftlib import FFTB

MB = 1 << 20
XN_OFF = 0
YT_OFF = 2 * MB
ZT_OFF = 8 * MB
WT_OFF = 14 * MB
W1T_OFF = 17 * MB
W2T_OFF = 19 * MB
H_OFF = 21 * MB
G_OFF = 28 * MB
WS_BYTES = 268435456

S, D, F = 2048, 512, 1376
FP = 1408

KA_X, KA_WR, KA_WI, KA_BX, KA_W1, KA_W2, KA_OUT, KA_DBG, KA_WS = [8 * i for i in range(9)]


def srd(k, s, sptr, nbytes):
    k(f"s_mov_b32 s{s}, s{sptr}")
    k(f"s_and_b32 s{s+1}, s{sptr+1}, 0xffff")
    k(f"s_mov_b32 s{s+2}, {nbytes}")
    k(f"s_mov_b32 s{s+3}, 0x00020000")


def wave_sum(k, pool, vals, vperm32):
    for m in (1, 2, 4, 8, 16):
        off = (m << 10) | 0x1F
        tmps = [pool.alloc() for _ in vals]
        for v, t in zip(vals, tmps):
            k(f"ds_swizzle_b32 v{t}, v{v} offset:{off}")
        k("s_waitcnt lgkmcnt(0)")
        for v, t in zip(vals, tmps):
            k(f"v_add_f32 v{v}, v{v}, v{t}")
        pool.free(tmps)
    tmps = [pool.alloc() for _ in vals]
    for v, t in zip(vals, tmps):
        k(f"ds_bpermute_b32 v{t}, v{vperm32}, v{v}")
    k("s_waitcnt lgkmcnt(0)")
    for v, t in zip(vals, tmps):
        k(f"v_add_f32 v{v}, v{v}, v{t}")
    pool.free(tmps)


def bf16_round_pair(k, pool, a, b):
    t = pool.alloc()
    k(f"v_cvt_pk_bf16_f32 v{t}, v{a}, v{b}")
    k(f"v_lshlrev_b32 v{a}, 16, v{t}")
    k(f"v_and_b32 v{b}, 0xffff0000, v{t}")
    pool.free(t)


def gen_transpose_role(k, tag, wg0, ntr, ntc, src_srds, src_pitch, ncols_src, dst_off, dst_pitch_elems,
                       dst_rows_valid, packed):
    esz = 4 if packed else 2
    k(f"s_sub_u32 s20, s2, {wg0}")
    if ntr & (ntr - 1) == 0:
        lg = ntr.bit_length() - 1
        k(f"s_and_b32 s21, s20, {ntr-1}")
        k(f"s_lshr_b32 s22, s20, {lg}")
    else:
        magic = (1 << 32) // ntr + 1
        k(f"s_mul_hi_u32 s22, s20, {magic}")
        k(f"s_mul_i32 s23, s22, {ntr}")
        k(f"s_sub_u32 s21, s20, s23")
    k("s_lshl_b32 s21, s21, 6")
    k("s_lshl_b32 s22, s22, 6")
    k("v_and_b32 v1, 63, v0")
    k("v_lshrrev_b32 v2, 6, v0")
    k("v_lshlrev_b32 v3, 4, v2")
    k("v_add_u32 v3, s21, v3")
    k(f"s_mov_b32 s23, {src_pitch}")
    k("v_mul_lo_u32 v3, v3, s23")
    k("v_add_u32 v4, s22, v1")
    k("v_lshl_add_u32 v3, v4, 1, v3")
    k(f"v_cmp_gt_u32 vcc, {ncols_src}, v4")
    nsrc = len(src_srds)
    base = 8
    for a, sr in enumerate(src_srds):
        for i in range(16):
            k(f"s_mov_b32 s24, {i*src_pitch}")
            k(f"buffer_load_ushort v{base + a*16 + i}, v3, s[{sr}:{sr+3}], s24 offen")
    k("s_waitcnt vmcnt(0)")
    for a in range(nsrc):
        for i in range(16):
            r = base + a * 16 + i
            k(f"v_cndmask_b32 v{r}, 0, v{r}, vcc")
    if packed:
        for i in range(16):
            k(f"v_lshl_or_b32 v{base+i}, v{base+16+i}, 16, v{base+i}")
    k("v_mul_u32_u24 v5, 65, v1")
    k("v_lshl_add_u32 v5, v2, 4, v5")
    k("v_lshlrev_b32 v5, 2, v5")
    for i in range(16):
        k(f"ds_write_b32 v5, v{base+i} offset:{4*i}")
    k("s_waitcnt lgkmcnt(0)")
    k("s_barrier")
    k("v_mul_u32_u24 v6, 65, v2")
    k("v_lshlrev_b32 v6, 4, v6")
    k("v_add_u32 v6, v6, v1")
    k("v_lshlrev_b32 v6, 2, v6")
    for i in range(16):
        k(f"ds_read_b32 v{base+i}, v6 offset:{4*65*i}")
    k("v_lshlrev_b32 v7, 4, v2")
    k("v_add_u32 v7, s22, v7")
    k(f"s_mov_b32 s23, {dst_pitch_elems}")
    k("v_mul_lo_u32 v7, v7, s23")
    k("v_add_u32 v7, v7, v1")
    k("v_add_u32 v7, s21, v7")
    k(f"v_lshlrev_b32 v7, {2 if packed else 1}, v7")
    k("s_waitcnt lgkmcnt(0)")
    done = k.newlabel("Ltd" + tag)
    k("v_readfirstlane_b32 s25, v2")
    k("s_lshl_b32 s25, s25, 4")
    k("s_add_u32 s25, s25, s22")
    for i in range(16):
        k(f"s_add_u32 s26, s25, {i}")
        k(f"s_cmp_ge_u32 s26, {dst_rows_valid}")
        k(f"s_cbranch_scc1 {done}")
        k(f"s_mov_b32 s24, {dst_off + i*dst_pitch_elems*esz}")
        if packed:
            k(f"buffer_store_dword v{base+i}, v7, s[12:15], s24 offen")
        else:
            k(f"buffer_store_short v{base+i}, v7, s[12:15], s24 offen")
    k.label(done)
    k("s_endpgm")


NWG_FFT1 = 256
NT_W = 32 * 5
NT_W1 = 8 * 22
NT_W2 = 22 * 8
K1_WGS = NWG_FFT1 + NT_W + NT_W1 + NT_W2


def gen_k1():
    k = Kern("k1")
    k(f"s_cmp_ge_u32 s2, {K1_WGS}")
    k("s_cbranch_scc1 Lend_k1")
    k(f"s_load_dwordx2 s[4:5], s[0:1], {KA_X}")
    k(f"s_load_dwordx2 s[6:7], s[0:1], {KA_WS}")
    k(f"s_load_dwordx4 s[28:31], s[0:1], {KA_WR}")
    k(f"s_load_dwordx4 s[32:35], s[0:1], {KA_W1}")
    k("s_waitcnt lgkmcnt(0)")
    srd(k, 8, 4, S * D * 2)
    srd(k, 12, 6, WS_BYTES)
    k(f"s_cmp_ge_u32 s2, {NWG_FFT1}")
    k("s_cbranch_scc1 Ltrans_k1")
    pool = Pool(range(8, 128))
    fb = FFTB(k, pool, "s16")
    k(f"s_mov_b32 s16, {fhex(math.sqrt(0.5))}")
    k("v_and_b32 v1, 63, v0")
    k("v_lshrrev_b32 v2, 6, v0")
    k("s_lshl_b32 s17, s2, 13")
    k("v_lshlrev_b32 v3, 11, v2")
    k("v_lshl_add_u32 v3, v1, 1, v3")
    k("v_add_u32 v3, s17, v3")
    k("v_xor_b32 v4, 32, v1")
    k("v_lshlrev_b32 v4, 2, v4")
    k("v_lshlrev_b32 v5, 12, v2")
    a = [pool.alloc() for _ in range(8)]
    b = [pool.alloc() for _ in range(8)]
    for j in range(8):
        k(f"buffer_load_ushort v{a[j]}, v3, s[8:11], 0 offen offset:{128*j}")
    for j in range(8):
        k(f"buffer_load_ushort v{b[j]}, v3, s[8:11], 0 offen offset:{1024+128*j}")
    k("s_waitcnt vmcnt(0)")
    for j in range(8):
        k(f"v_lshlrev_b32 v{a[j]}, 16, v{a[j]}")
        k(f"v_lshlrev_b32 v{b[j]}, 16, v{b[j]}")
    sa = pool.alloc()
    sb = pool.alloc()
    k(f"v_add_f32 v{sa}, v{a[0]}, v{a[1]}")
    k(f"v_add_f32 v{sb}, v{b[0]}, v{b[1]}")
    for j in range(2, 8):
        k(f"v_add_f32 v{sa}, v{sa}, v{a[j]}")
        k(f"v_add_f32 v{sb}, v{sb}, v{b[j]}")
    wave_sum(k, pool, [sa, sb], 4)
    k(f"v_mul_f32 v{sa}, {fhex(1.0/512)}, v{sa}")
    k(f"v_mul_f32 v{sb}, {fhex(1.0/512)}, v{sb}")
    qa = pool.alloc()
    qb = pool.alloc()
    t = pool.alloc()
    k(f"v_mov_b32 v{qa}, 0")
    k(f"v_mov_b32 v{qb}, 0")
    for j in range(8):
        k(f"v_sub_f32 v{t}, v{a[j]}, v{sa}")
        k(f"v_fma_f32 v{qa}, v{t}, v{t}, v{qa}")
        k(f"v_sub_f32 v{t}, v{b[j]}, v{sb}")
        k(f"v_fma_f32 v{qb}, v{t}, v{t}, v{qb}")
    pool.free(t)
    wave_sum(k, pool, [qa, qb], 4)
    k(f"v_mul_f32 v{qa}, {fhex(1.0/512)}, v{qa}")
    k(f"v_mul_f32 v{qb}, {fhex(1.0/512)}, v{qb}")
    bf16_round_pair(k, pool, sa, sb)
    bf16_round_pair(k, pool, qa, qb)
    k(f"v_add_f32 v{qa}, {fhex(1e-5)}, v{qa}")
    k(f"v_add_f32 v{qb}, {fhex(1e-5)}, v{qb}")
    bf16_round_pair(k, pool, qa, qb)
    k(f"v_sqrt_f32 v{qa}, v{qa}")
    k(f"v_sqrt_f32 v{qb}, v{qb}")
    bf16_round_pair(k, pool, qa, qb)
    k(f"v_rcp_f32 v{qa}, v{qa}")
    k(f"v_rcp_f32 v{qb}, v{qb}")
    pk = [pool.alloc() for _ in range(8)]
    for j in range(8):
        k(f"v_sub_f32 v{a[j]}, v{a[j]}, v{sa}")
        k(f"v_sub_f32 v{b[j]}, v{b[j]}, v{sb}")
        bf16_round_pair(k, pool, a[j], b[j])
        k(f"v_mul_f32 v{a[j]}, v{a[j]}, v{qa}")
        k(f"v_mul_f32 v{b[j]}, v{b[j]}, v{qb}")
        k(f"v_cvt_pk_bf16_f32 v{pk[j]}, v{a[j]}, v{b[j]}")
        k(f"v_lshlrev_b32 v{a[j]}, 16, v{pk[j]}")
        k(f"v_and_b32 v{b[j]}, 0xffff0000, v{pk[j]}")
    for j in range(8):
        k(f"buffer_store_short v{pk[j]}, v3, s[12:15], 0 offen offset:{128*j}")
        k(f"buffer_store_short_d16_hi v{pk[j]}, v3, s[12:15], 0 offen offset:{1024+128*j}")
    pool.free(pk)
    pool.free([sa, sb, qa, qb])
    x = [(a[j], b[j]) for j in range(8)]
    vrd = pool.alloc()
    k(f"v_lshl_add_u32 v{vrd}, v1, 3, v5")
    outs = [pool.alloc_n(2, 2) for _ in range(8)]
    X = fb.radix8(x, False, [(o, o + 1) for o in outs])
    vw = pool.alloc()
    k(f"v_lshl_add_u32 v{vw}, v1, 6, v5")
    for r in range(8):
        k(f"ds_write_b64 v{vw}, v[{outs[r]}:{outs[r]+1}] offset:{8*r}")
    k("s_waitcnt lgkmcnt(0)")
    ins = outs
    for r in range(8):
        k(f"ds_read_b64 v[{ins[r]}:{ins[r]+1}], v{vrd} offset:{512*r}")
    k("s_waitcnt lgkmcnt(0)")
    x = [(ins[r], ins[r] + 1) for r in range(8)]
    vk = pool.alloc()
    k(f"v_and_b32 v{vk}, 7, v1")
    x = fb.twiddle(x, vk, -1.0 / 64, 8)
    outs = [pool.alloc_n(2, 2) for _ in range(8)]
    X = fb.radix8(x, False, [(o, o + 1) for o in outs])
    k(f"v_lshrrev_b32 v{vw}, 3, v1")
    k(f"v_lshl_add_u32 v{vw}, v{vw}, 9, v5")
    k(f"v_lshl_add_u32 v{vw}, v{vk}, 3, v{vw}")
    for r in range(8):
        k(f"ds_write_b64 v{vw}, v[{outs[r]}:{outs[r]+1}] offset:{64*r}")
    k("s_waitcnt lgkmcnt(0)")
    ins = outs
    for r in range(8):
        k(f"ds_read_b64 v[{ins[r]}:{ins[r]+1}], v{vrd} offset:{512*r}")
    k("s_waitcnt lgkmcnt(0)")
    x = [(ins[r], ins[r] + 1) for r in range(8)]
    x = fb.twiddle(x, 1, -1.0 / 512, 8)
    outs = [pool.alloc_n(2, 2) for _ in range(8)]
    X = fb.radix8(x, False, [(o, o + 1) for o in outs])
    for r in range(8):
        k(f"ds_write_b64 v{vrd}, v[{outs[r]}:{outs[r]+1}] offset:{512*r}")
    k("s_waitcnt lgkmcnt(0)")
    k("s_barrier")
    for o in outs:
        pool.free_n(o, 2)
    vq = pool.alloc()
    vkb = pool.alloc()
    k(f"v_and_b32 v{vq}, 3, v0")
    k(f"v_lshrrev_b32 v{vkb}, 2, v0")
    vqb = pool.alloc()
    k(f"v_lshlrev_b32 v{vqb}, 12, v{vq}")
    vg = pool.alloc()
    k(f"v_lshlrev_b32 v{vg}, 4, v{vq}")
    k("s_lshl_b32 s17, s2, 6")
    k(f"v_add_u32 v{vg}, s17, v{vg}")
    k(f"v_lshl_add_u32 v{vg}, v{vkb}, 14, v{vg}")
    half = fhex(0.5)

    def unpack_store(kreg, it_off_g, guard=None):
        za = pool.alloc_n(2, 2)
        zm = pool.alloc_n(2, 2)
        ad = pool.alloc()
        am = pool.alloc()
        k(f"v_lshl_add_u32 v{ad}, v{kreg}, 3, v{vqb}")
        k(f"v_sub_u32 v{am}, 512, v{kreg}")
        k(f"v_and_b32 v{am}, 511, v{am}")
        k(f"v_lshl_add_u32 v{am}, v{am}, 3, v{vqb}")
        k(f"ds_read_b64 v[{za}:{za+1}], v{ad}")
        k(f"ds_read_b64 v[{zm}:{zm+1}], v{am}")
        o = pool.alloc_n(4, 4)
        k("s_waitcnt lgkmcnt(0)")
        k(f"v_add_f32 v{o}, v{za}, v{zm}")
        k(f"v_sub_f32 v{o+1}, v{za+1}, v{zm+1}")
        k(f"v_add_f32 v{o+2}, v{za+1}, v{zm+1}")
        k(f"v_sub_f32 v{o+3}, v{zm}, v{za}")
        for i in range(4):
            k(f"v_mul_f32 v{o+i}, 0.5, v{o+i}")
        return o, [za, zm, ad, am]

    for it in range(4):
        kr = pool.alloc()
        k(f"v_add_u32 v{kr}, {64*it}, v{vkb}")
        o, tmp = unpack_store(kr, 0)
        k(f"s_mov_b32 s18, {YT_OFF + it*64*16384}")
        k(f"buffer_store_dwordx4 v[{o}:{o+3}], v{vg}, s[12:15], s18 offen")
        pool.free(kr)
        pool.free_n(tmp[0], 2)
        pool.free_n(tmp[1], 2)
        pool.free(tmp[2])
        pool.free(tmp[3])
        pool.free_n(o, 4)
    k("v_cmp_gt_u32 vcc, 4, v0")
    k("s_and_saveexec_b64 s[20:21], vcc")
    k("s_cbranch_execz Lskip256_k1")
    kr = pool.alloc()
    k(f"v_mov_b32 v{kr}, 256")
    o, tmp = unpack_store(kr, 0)
    vg2 = pool.alloc()
    k(f"v_lshlrev_b32 v{vg2}, 4, v{vq}")
    k(f"v_add_u32 v{vg2}, s17, v{vg2}")
    k(f"s_mov_b32 s18, {YT_OFF + 256*16384}")
    k(f"buffer_store_dwordx4 v[{o}:{o+3}], v{vg2}, s[12:15], s18 offen")
    k.label("Lskip256_k1")
    k("s_endpgm")
    k.label("Ltrans_k1")
    k(f"s_cmp_ge_u32 s2, {NWG_FFT1 + NT_W}")
    k("s_cbranch_scc1 Ltrans2_k1")
    srd(k, 36, 28, 2048 * 257 * 2)
    srd(k, 40, 30, 2048 * 257 * 2)
    gen_transpose_role(k, "w", NWG_FFT1, 32, 5, [36, 40], 514, 257, WT_OFF, 2048, 257, True)
    k.label("Ltrans2_k1")
    k(f"s_cmp_ge_u32 s2, {NWG_FFT1 + NT_W + NT_W1}")
    k("s_cbranch_scc1 Ltrans3_k1")
    srd(k, 36, 32, D * F * 2)
    gen_transpose_role(k, "w1", NWG_FFT1 + NT_W, 8, 22, [36], F * 2, F, W1T_OFF, D, FP, False)
    k.label("Ltrans3_k1")
    srd(k, 36, 34, F * D * 2)
    gen_transpose_role(k, "w2", NWG_FFT1 + NT_W + NT_W1, 22, 8, [36], D * 2, D, W2T_OFF, FP, D, False)
    k.label("Lend_k1")
    k("s_endpgm")
    return k, 128, 104, 16384 + 1024


K2_WGS = 257


def gen_k2():
    k = Kern("k2")
    k(f"s_cmp_ge_u32 s2, {K2_WGS}")
    k("s_cbranch_scc1 Lend_k2")
    k(f"s_load_dwordx2 s[6:7], s[0:1], {KA_WS}")
    k("s_waitcnt lgkmcnt(0)")
    srd(k, 12, 6, WS_BYTES)
    pool = Pool(range(8, 200))
    fb = FFTB(k, pool, "s16")
    k(f"s_mov_b32 s16, {fhex(math.sqrt(0.5))}")
    k("s_lshl_b32 s17, s2, 14")
    k("v_lshlrev_b32 v1, 3, v0")
    k("v_add_u32 v1, s17, v1")
    ins = [pool.alloc_n(2, 2) for _ in range(8)]
    for m in range(8):
        k(f"s_mov_b32 s18, {YT_OFF + 2048*m}")
        k(f"buffer_load_dwordx2 v[{ins[m]}:{ins[m]+1}], v1, s[12:15], s18 offen")
    wv = [pool.alloc() for _ in range(8)]
    k("s_lshl_b32 s17, s2, 13")
    k("v_lshlrev_b32 v2, 2, v0")
    k("v_add_u32 v2, s17, v2")
    for m in range(8):
        k(f"s_mov_b32 s19, {WT_OFF + 1024*m}")
        k(f"buffer_load_dword v{wv[m]}, v2, s[12:15], s19 offen")
    k("v_lshlrev_b32 v3, 3, v0")
    k("s_waitcnt vmcnt(8)")
    x = [(ins[m], ins[m] + 1) for m in range(8)]
    LDSB = [0, 16384]

    def fft2048(x, inv, first_buf):
        sg = 1.0 if inv else -1.0
        buf = first_buf
        vw = pool.alloc()
        vk = pool.alloc()
        outs = [pool.alloc_n(2, 2) for _ in range(8)]
        fb.radix8(x, inv, [(o, o + 1) for o in outs])
        k(f"v_lshlrev_b32 v{vw}, 6, v0")
        for r in range(8):
            k(f"ds_write_b64 v{vw}, v[{outs[r]}:{outs[r]+1}] offset:{LDSB[buf] + 8*r}")
        k("s_waitcnt lgkmcnt(0)")
        k("s_barrier")
        for r in range(8):
            k(f"ds_read_b64 v[{outs[r]}:{outs[r]+1}], v3 offset:{LDSB[buf] + 2048*r}")
        k("s_waitcnt lgkmcnt(0)")
        x = [(o, o + 1) for o in outs]
        buf ^= 1
        for Ns in (8, 64):
            k(f"v_and_b32 v{vk}, {Ns-1}, v0")
            x = fb.twiddle(x, vk, sg / (Ns * 8), 8)
            outs = [pool.alloc_n(2, 2) for _ in range(8)]
            fb.radix8(x, inv, [(o, o + 1) for o in outs])
            lg = Ns.bit_length() - 1
            k(f"v_lshrrev_b32 v{vw}, {lg}, v0")
            k(f"v_lshlrev_b32 v{vw}, {lg+3+3}, v{vw}")
            k(f"v_lshl_add_u32 v{vw}, v{vk}, 3, v{vw}")
            for r in range(8):
                k(f"ds_write_b64 v{vw}, v[{outs[r]}:{outs[r]+1}] offset:{LDSB[buf] + 8*Ns*r}")
            k("s_waitcnt lgkmcnt(0)")
            k("s_barrier")
            for r in range(8):
                k(f"ds_read_b64 v[{outs[r]}:{outs[r]+1}], v3 offset:{LDSB[buf] + 2048*r}")
            k("s_waitcnt lgkmcnt(0)")
            x = [(o, o + 1) for o in outs]
            buf ^= 1
        res = [None] * 8
        for h in range(2):
            xx = [x[2 * r + h] for r in range(4)]
            if h == 0:
                k(f"v_mov_b32 v{vk}, v0")
            else:
                k(f"v_add_u32 v{vk}, 256, v0")
            xx = fb.twiddle(xx, vk, sg / 2048.0, 4)
            Y = fb.radix4(xx, inv)
            for r in range(4):
                res[2 * r + h] = Y[r]
        pool.free(vw)
        pool.free(vk)
        return res, buf

    X, buf = fft2048(x, False, 0)
    k("s_waitcnt vmcnt(0)")
    sc = fhex(1.0 / (2048.0 * 512.0))
    for m in range(8):
        c = pool.alloc()
        s_ = pool.alloc()
        k(f"v_lshlrev_b32 v{c}, 16, v{wv[m]}")
        k(f"v_and_b32 v{s_}, 0xffff0000, v{wv[m]}")
        k(f"v_mul_f32 v{c}, {sc}, v{c}")
        k(f"v_mul_f32 v{s_}, {sc}, v{s_}")
        X[m] = fb.cmul(X[m], c, s_)
        pool.free(c)
        pool.free(s_)
    pool.free(wv)
    Z, buf = fft2048(X, True, buf)
    for m in range(8):
        o = pool.alloc_n(2, 2)
        k(f"v_mov_b32 v{o}, v{Z[m][0]}")
        k(f"v_mov_b32 v{o+1}, v{Z[m][1]}")
        k(f"s_mov_b32 s18, {ZT_OFF + 2048*m}")
        k(f"buffer_store_dwordx2 v[{o}:{o+1}], v1, s[12:15], s18 offen")
    k.label("Lend_k2")
    k("s_endpgm")
    return k, 200, 104, 32768


K4_WGS = 256


def gen_k4():
    k = Kern("k4")
    k(f"s_cmp_ge_u32 s2, {K4_WGS}")
    k("s_cbranch_scc1 Lend_k4")
    k(f"s_load_dwordx2 s[4:5], s[0:1], {KA_X}")
    k(f"s_load_dwordx2 s[6:7], s[0:1], {KA_WS}")
    k(f"s_load_dwordx2 s[28:29], s[0:1], {KA_OUT}")
    k("s_waitcnt lgkmcnt(0)")
    srd(k, 8, 4, S * D * 2)
    srd(k, 12, 6, WS_BYTES)
    srd(k, 32, 28, S * D * 2)
    pool = Pool(range(8, 160))
    fb = FFTB(k, pool, "s16")
    k(f"s_mov_b32 s16, {fhex(math.sqrt(0.5))}")
    AB_STRIDE = 4352
    k("v_and_b32 v1, 63, v0")
    k("v_lshrrev_b32 v2, 6, v0")
    vq = pool.alloc()
    vkb = pool.alloc()
    k(f"v_and_b32 v{vq}, 3, v0")
    k(f"v_lshrrev_b32 v{vkb}, 2, v0")
    vg = pool.alloc()
    k(f"v_lshlrev_b32 v{vg}, 4, v{vq}")
    k("s_lshl_b32 s17, s2, 6")
    k(f"v_add_u32 v{vg}, s17, v{vg}")
    vg2 = pool.alloc()
    k(f"v_mov_b32 v{vg2}, v{vg}")
    k(f"v_lshl_add_u32 v{vg}, v{vkb}, 14, v{vg}")
    ld = [pool.alloc_n(4, 4) for _ in range(4)]
    for it in range(4):
        k(f"s_mov_b32 s18, {ZT_OFF + it*64*16384}")
        k(f"buffer_load_dwordx4 v[{ld[it]}:{ld[it]+3}], v{vg}, s[12:15], s18 offen")
    l256 = pool.alloc_n(4, 4)
    k(f"s_mov_b32 s18, {ZT_OFF + 256*16384}")
    k(f"buffer_load_dwordx4 v[{l256}:{l256+3}], v{vg2}, s[12:15], s18 offen")
    vl = pool.alloc()
    k(f"v_mul_u32_u24 v{vl}, {AB_STRIDE}, v{vq}")
    vl2 = pool.alloc()
    k(f"v_add_u32 v{vl2}, {256*16}, v{vl}")
    k(f"v_lshl_add_u32 v{vl}, v{vkb}, 4, v{vl}")
    k("s_waitcnt vmcnt(0)")
    k(f"v_cmp_eq_u32 vcc, 0, v{vkb}")
    k(f"v_cndmask_b32 v{ld[0]+1}, v{ld[0]+1}, 0, vcc")
    k(f"v_cndmask_b32 v{ld[0]+3}, v{ld[0]+3}, 0, vcc")
    k(f"v_mov_b32 v{l256+1}, 0")
    k(f"v_mov_b32 v{l256+3}, 0")
    for it in range(4):
        k(f"ds_write_b128 v{vl}, v[{ld[it]}:{ld[it]+3}] offset:{it*1024}")
    k(f"ds_write_b128 v{vl2}, v[{l256}:{l256+3}]")
    k("s_waitcnt lgkmcnt(0)")
    k("s_barrier")
    for r_ in ld:
        pool.free_n(r_, 4)
    pool.free_n(l256, 4)
    pool.free([vq, vkb, vg, vg2, vl, vl2])
    vab = pool.alloc()
    k(f"v_mul_u32_u24 v{vab}, {AB_STRIDE}, v2")
    x = []
    tmp4 = [pool.alloc_n(4, 4) for _ in range(8)]
    for j in range(8):
        ad = pool.alloc()
        if j < 4:
            k(f"v_add_u32 v{ad}, {64*j}, v1")
        else:
            k(f"v_sub_u32 v{ad}, {512-64*j}, v1")
        k(f"v_lshl_add_u32 v{ad}, v{ad}, 4, v{vab}")
        k(f"ds_read_b128 v[{tmp4[j]}:{tmp4[j]+3}], v{ad}")
        pool.free(ad)
    k("s_waitcnt lgkmcnt(0)")
    for j in range(8):
        o = tmp4[j]
        re = pool.alloc()
        im = pool.alloc()
        if j < 4:
            k(f"v_sub_f32 v{re}, v{o}, v{o+3}")
            k(f"v_add_f32 v{im}, v{o+1}, v{o+2}")
        else:
            k(f"v_add_f32 v{re}, v{o}, v{o+3}")
            k(f"v_sub_f32 v{im}, v{o+2}, v{o+1}")
        x.append((re, im))
    for o in tmp4:
        pool.free_n(o, 4)
    vrd = pool.alloc()
    k(f"v_lshl_add_u32 v{vrd}, v1, 3, v{vab}")
    vw = pool.alloc()
    vk = pool.alloc()
    outs = [pool.alloc_n(2, 2) for _ in range(8)]
    fb.radix8(x, True, [(o, o + 1) for o in outs])
    k(f"v_lshl_add_u32 v{vw}, v1, 6, v{vab}")
    k("s_waitcnt lgkmcnt(0)")
    for r in range(8):
        k(f"ds_write_b64 v{vw}, v[{outs[r]}:{outs[r]+1}] offset:{8*r}")
    k("s_waitcnt lgkmcnt(0)")
    for r in range(8):
        k(f"ds_read_b64 v[{outs[r]}:{outs[r]+1}], v{vrd} offset:{512*r}")
    k("s_waitcnt lgkmcnt(0)")
    x = [(o, o + 1) for o in outs]
    k(f"v_and_b32 v{vk}, 7, v1")
    x = fb.twiddle(x, vk, 1.0 / 64, 8)
    outs = [pool.alloc_n(2, 2) for _ in range(8)]
    fb.radix8(x, True, [(o, o + 1) for o in outs])
    k(f"v_lshrrev_b32 v{vw}, 3, v1")
    k(f"v_lshl_add_u32 v{vw}, v{vw}, 9, v{vab}")
    k(f"v_lshl_add_u32 v{vw}, v{vk}, 3, v{vw}")
    for r in range(8):
        k(f"ds_write_b64 v{vw}, v[{outs[r]}:{outs[r]+1}] offset:{64*r}")
    k("s_waitcnt lgkmcnt(0)")
    for r in range(8):
        k(f"ds_read_b64 v[{outs[r]}:{outs[r]+1}], v{vrd} offset:{512*r}")
    k("s_waitcnt lgkmcnt(0)")
    x = [(o, o + 1) for o in outs]
    x = fb.twiddle(x, 1, 1.0 / 512, 8)
    z = fb.radix8(x, True)
    k("s_lshl_b32 s17, s2, 13")
    k("v_lshlrev_b32 v3, 11, v2")
    k("v_lshl_add_u32 v3, v1, 1, v3")
    k("v_add_u32 v3, s17, v3")
    xa = [pool.alloc() for _ in range(8)]
    xb = [pool.alloc() for _ in range(8)]
    ga = [pool.alloc() for _ in range(8)]
    gb = [pool.alloc() for _ in range(8)]
    k(f"s_mov_b32 s18, {G_OFF}")
    for j in range(8):
        k(f"buffer_load_ushort v{xa[j]}, v3, s[8:11], 0 offen offset:{128*j}")
        k(f"buffer_load_ushort v{xb[j]}, v3, s[8:11], 0 offen offset:{1024+128*j}")
        k(f"buffer_load_ushort v{ga[j]}, v3, s[12:15], s18 offen offset:{128*j}")
        k(f"buffer_load_ushort v{gb[j]}, v3, s[12:15], s18 offen offset:{1024+128*j}")
    k("s_waitcnt vmcnt(0)")
    for j in range(8):
        sa, sb = z[j]
        bf16_round_pair(k, pool, sa, sb)
        k(f"v_lshlrev_b32 v{ga[j]}, 16, v{ga[j]}")
        k(f"v_lshlrev_b32 v{gb[j]}, 16, v{gb[j]}")
        k(f"v_lshlrev_b32 v{xa[j]}, 16, v{xa[j]}")
        k(f"v_lshlrev_b32 v{xb[j]}, 16, v{xb[j]}")
        k(f"v_mul_f32 v{sa}, v{sa}, v{ga[j]}")
        k(f"v_mul_f32 v{sb}, v{sb}, v{gb[j]}")
        bf16_round_pair(k, pool, sa, sb)
        k(f"v_add_f32 v{sa}, v{sa}, v{xa[j]}")
        k(f"v_add_f32 v{sb}, v{sb}, v{xb[j]}")
        k(f"v_cvt_pk_bf16_f32 v{xa[j]}, v{sa}, v{sb}")
        k(f"buffer_store_short v{xa[j]}, v3, s[32:35], 0 offen offset:{128*j}")
        k(f"buffer_store_short_d16_hi v{xa[j]}, v3, s[32:35], 0 offen offset:{1024+128*j}")
    k.label("Lend_k4")
    k("s_endpgm")
    return k, 160, 104, 4 * AB_STRIDE


def gen_gemm(name, A_off, lda, B_off, ldb, C_off, ldc, Kdim, MT, NT):
    k = Kern(name)
    NWG = MT * NT
    NK = Kdim // 64
    assert NK % 2 == 0
    k(f"s_cmp_ge_u32 s2, {NWG}")
    k(f"s_cbranch_scc1 Lend_{name}")
    k(f"s_load_dwordx2 s[6:7], s[0:1], {KA_WS}")
    k("s_waitcnt lgkmcnt(0)")
    srd(k, 12, 6, WS_BYTES)
    lg = MT.bit_length() - 1
    k(f"s_and_b32 s20, s2, {MT-1}")
    k(f"s_lshr_b32 s21, s2, {lg}")
    PITCH = 144
    TILE_B = 128 * PITCH
    BUF = [0, 2 * TILE_B]
    k("v_lshrrev_b32 v1, 3, v0")
    k("v_and_b32 v2, 7, v0")
    k(f"s_mul_i32 s22, s20, {128*lda*2}")
    k(f"s_mul_i32 s23, s21, {128*ldb*2}")
    k(f"s_mov_b32 s24, {lda*2}")
    k(f"s_mov_b32 s25, {ldb*2}")
    k("v_mul_lo_u32 v3, v1, s24")
    k("v_lshl_add_u32 v3, v2, 4, v3")
    k("v_add_u32 v3, s22, v3")
    k("v_mul_lo_u32 v4, v1, s25")
    k("v_lshl_add_u32 v4, v2, 4, v4")
    k("v_add_u32 v4, s23, v4")
    k(f"v_mul_u32_u24 v5, {PITCH}, v1")
    k("v_lshl_add_u32 v5, v2, 4, v5")
    k("v_lshrrev_b32 v6, 6, v0")
    k("v_and_b32 v7, 63, v0")
    k("v_and_b32 v8, 31, v7")
    k("v_lshrrev_b32 v9, 5, v7")
    k("v_and_b32 v10, 1, v6")
    k("v_lshrrev_b32 v11, 1, v6")
    k("v_lshl_add_u32 v12, v10, 6, v8")
    k(f"v_mul_u32_u24 v12, {PITCH}, v12")
    k("v_lshl_add_u32 v12, v9, 4, v12")
    k("v_lshl_add_u32 v13, v11, 6, v8")
    k(f"v_mul_u32_u24 v13, {PITCH}, v13")
    k("v_lshl_add_u32 v13, v9, 4, v13")
    k(f"v_add_u32 v13, {TILE_B}, v13")
    k(f"v_add_u32 v144, {BUF[1]}, v5")
    k(f"v_add_u32 v145, {BUF[1]}, v12")
    k(f"v_add_u32 v146, {BUF[1]}, v13")
    G = 16
    FR = 48
    ACC = 80
    for i in range(64):
        k(f"v_mov_b32 v{ACC+i}, 0")
    def issue_loads(ktile):
        for i in range(4):
            k(f"s_mov_b32 s26, {A_off + i*32*lda*2 + ktile*128}")
            k(f"buffer_load_dwordx4 v[{G+4*i}:{G+4*i+3}], v3, s[12:15], s26 offen")
        for i in range(4):
            k(f"s_mov_b32 s26, {B_off + i*32*ldb*2 + ktile*128}")
            k(f"buffer_load_dwordx4 v[{G+16+4*i}:{G+16+4*i+3}], v4, s[12:15], s26 offen")

    def write_lds(buf):
        av = 5 if buf == 0 else 144
        for i in range(4):
            k(f"ds_write_b128 v{av}, v[{G+4*i}:{G+4*i+3}] offset:{i*32*PITCH}")
        for i in range(4):
            k(f"ds_write_b128 v{av}, v[{G+16+4*i}:{G+16+4*i+3}] offset:{TILE_B + i*32*PITCH}")

    def read_frags(buf, ks, fs):
        f = FR + 16 * fs
        va = 12 if buf == 0 else 145
        vb = 13 if buf == 0 else 146
        for i in range(2):
            k(f"ds_read_b128 v[{f+4*i}:{f+4*i+3}], v{va} offset:{i*32*PITCH + ks*32}")
        for j in range(2):
            k(f"ds_read_b128 v[{f+8+4*j}:{f+8+4*j+3}], v{vb} offset:{j*32*PITCH + ks*32}")

    def compute(buf):
        read_frags(buf, 0, 0)
        for ks in range(4):
            if ks < 3:
                read_frags(buf, ks + 1, (ks + 1) % 2)
                k("s_waitcnt lgkmcnt(4)")
            else:
                k("s_waitcnt lgkmcnt(0)")
            f = FR + 16 * (ks % 2)
            for i in range(2):
                for j in range(2):
                    acc = ACC + 16 * (2 * i + j)
                    k(f"v_mfma_f32_32x32x16_bf16 v[{acc}:{acc+15}], v[{f+8+4*j}:{f+8+4*j+3}], "
                      f"v[{f+4*i}:{f+4*i+3}], v[{acc}:{acc+15}]")

    issue_loads(0)
    k("s_waitcnt vmcnt(0)")
    write_lds(0)
    issue_loads(1)
    k("s_waitcnt lgkmcnt(0)")
    k("s_barrier")
    for it in range(NK):
        buf = it % 2
        compute(buf)
        if it + 1 < NK:
            k("s_waitcnt vmcnt(0)")
            write_lds(buf ^ 1)
            if it + 2 < NK:
                issue_loads(it + 2)
            k("s_waitcnt lgkmcnt(0)")
            k("s_barrier")
    k("v_lshl_add_u32 v14, v10, 6, v8")
    k("s_lshl_b32 s22, s20, 7")
    k("v_add_u32 v14, s22, v14")
    k(f"s_mov_b32 s24, {ldc*2}")
    k("v_mul_lo_u32 v14, v14, s24")
    k("v_lshlrev_b32 v15, 6, v11")
    k("v_lshl_add_u32 v15, v9, 2, v15")
    k("s_lshl_b32 s23, s21, 7")
    k("v_add_u32 v15, s23, v15")
    k("v_lshl_add_u32 v14, v15, 1, v14")
    k(f"s_mov_b32 s27, {fhex(-1.4426950408889634)}")
    T = 16
    for i in range(2):
        for j in range(2):
            acc = ACC + 16 * (2 * i + j)
            for g in range(4):
                vals = [acc + 4 * g + q for q in range(4)]
                for p in range(2):
                    a_, b_ = vals[2 * p], vals[2 * p + 1]
                    t = T + p
                    k(f"v_cvt_pk_bf16_f32 v{t}, v{a_}, v{b_}")
                    k(f"v_lshlrev_b32 v{T+4+2*p}, 16, v{t}")
                    k(f"v_and_b32 v{T+5+2*p}, 0xffff0000, v{t}")
                for q in range(4):
                    x_ = T + 4 + q
                    e_ = T + 8 + q
                    k(f"v_mul_f32 v{e_}, s27, v{x_}")
                    k(f"v_exp_f32 v{e_}, v{e_}")
                for q in range(4):
                    e_ = T + 8 + q
                    k(f"v_add_f32 v{e_}, 1.0, v{e_}")
                    k(f"v_rcp_f32 v{e_}, v{e_}")
                for q in range(4):
                    x_ = T + 4 + q
                    e_ = T + 8 + q
                    k(f"v_mul_f32 v{x_}, v{x_}, v{e_}")
                o = T + 12 + 2 * ((4 * (2 * i + j) + g) % 2)
                k(f"v_cvt_pk_bf16_f32 v{o}, v{T+4}, v{T+5}")
                k(f"v_cvt_pk_bf16_f32 v{o+1}, v{T+6}, v{T+7}")
                off = C_off + i * 32 * ldc * 2 + (j * 32 + 8 * g) * 2
                k(f"s_mov_b32 s26, {off}")
                k(f"buffer_store_dwordx2 v[{o}:{o+1}], v14, s[12:15], s26 offen")
    k.label(f"Lend_{name}")
    k("s_endpgm")
    return k, 148, 104, 4 * TILE_B


def build(launch_sel=None):
    kernels = []
    k1 = gen_k1()
    k2 = gen_k2()
    from gemm2 import gen_gemm2
    g1 = gen_gemm2("g1", XN_OFF, D, KA_W1, F, H_OFF, FP, D, 16, 11, BM=128, b_bytes=D*F*2)
    g2 = gen_gemm2("g2", H_OFF, FP, KA_W2, D, G_OFF, D, F, 32, 4, BM=64, b_bytes=F*D*2)
    k4 = gen_k4()
    launches = [
        ("k1_kernel", k1, K1_WGS, 256),
        ("k2_kernel", k2, K2_WGS, 256),
        ("g1_kernel", g1, 16 * 11, 256),
        ("g2_kernel", g2, 32 * 4, 256),
        ("k4_kernel", k4, K4_WGS, 256),
    ]
    hdr = open("recurrent_scan__spectral_gfnet__dense_activation_silu__prompt.s.ref").read()
    hdr_lines = []
    for line in hdr.split("\n"):
        if line.startswith(";") and "@launch" not in line:
            hdr_lines.append(line)
        elif not line.startswith(";"):
            break
    out = hdr_lines[:]
    for name, kk, grid, block in launches:
        out.append(f"; @launch kernel={name} grid=({grid},1,1) block=({block},1,1) lds={kk[3]}")
    out.append('.amdgcn_target "amdgcn-amd-amdhsa--gfx950"')
    out.append(".text")
    for name, kk, grid, block in launches:
        k, nv, ns, lds = kk
        out.append(f".globl {name}")
        out.append(".p2align 8")
        out.append(f".type {name},@function")
        out.append(f"{name}:")
        out.append(k.finalize())
    out.append('.section .rodata,"a"')
    for name, kk, grid, block in launches:
        k, nv, ns, lds = kk
        acc = (nv + 3) // 4 * 4
        out.append(".p2align 6")
        out.append(f".amdhsa_kernel {name}")
        out.append(f"  .amdhsa_next_free_vgpr {nv}")
        out.append(f"  .amdhsa_next_free_sgpr 102")
        out.append(f"  .amdhsa_accum_offset {acc}")
        out.append("  .amdhsa_group_segment_fixed_size 0")
        out.append("  .amdhsa_kernarg_size 72")
        out.append("  .amdhsa_user_sgpr_count 2")
        out.append("  .amdhsa_user_sgpr_kernarg_segment_ptr 1")
        out.append("  .amdhsa_system_sgpr_workgroup_id_x 1")
        out.append(".end_amdhsa_kernel")
    return "\n".join(out) + "\n"


if __name__ == "__main__":
    txt = build()
    path = sys.argv[1] if len(sys.argv) > 1 else "recurrent_scan__spectral_gfnet__dense_activation_silu__prompt.s"
    open(path, "w").write(txt)
    print("wrote", path, len(txt))
```

```python
from asmlib import Kern, fhex
from gen import srd, KA_WS, WS_BYTES


def gen_gemm2(name, A_off, lda, Bsrd_ptr_ka, ldb, C_off, ldc, Kdim, MT, NT, BM=128, BN=128, NS=4,
              b_bytes=None, ln_fold=False, a_bytes=None):
    k = Kern(name)
    NWG = MT * NT
    NKT = Kdim // 32
    WMW = 2 if BM == 128 else 1
    WNW = 4 // WMW
    TMI = BM // WMW // 32
    TNJ = BN // WNW // 32
    A_BYTES = BM * 64
    B_BYTES = 32 * BN * 2
    STAGE = A_BYTES + B_BYTES
    nda = BM // 64
    ndb = BN // 64
    nd = nda + ndb
    k(f"s_cmp_ge_u32 s2, {NWG}")
    k(f"s_cbranch_scc1 Lend_{name}")
    k(f"s_load_dwordx2 s[6:7], s[0:1], {KA_WS}")
    k(f"s_load_dwordx2 s[4:5], s[0:1], {Bsrd_ptr_ka}")
    if ln_fold:
        k(f"s_load_dwordx2 s[34:35], s[0:1], 0")
    k("s_waitcnt lgkmcnt(0)")
    srd(k, 12, 6, WS_BYTES)
    srd(k, 8, 4, b_bytes)
    ASRD = 12
    if ln_fold:
        srd(k, 36, 34, a_bytes)
        ASRD = 36
    lg = MT.bit_length() - 1
    k(f"s_and_b32 s20, s2, {MT-1}")
    k(f"s_lshr_b32 s21, s2, {lg}")
    k("v_lshrrev_b32 v1, 6, v0")
    k("v_and_b32 v2, 63, v0")
    k("v_readfirstlane_b32 s30, v1")
    k("v_lshrrev_b32 v3, 2, v2")
    k("v_and_b32 v4, 3, v2")
    k("v_bfe_u32 v5, v2, 4, 2")
    k("v_xor_b32 v4, v4, v5")
    k(f"s_mov_b32 s24, {lda*2}")
    k(f"s_mul_i32 s22, s20, {BM*lda*2}")
    k(f"s_mul_i32 s25, s30, {nda*16*lda*2}")
    k("s_add_u32 s22, s22, s25")
    vA = [10 + q for q in range(nda)]
    for q in range(nda):
        k(f"v_add_u32 v6, {16*q}, v3")
        k("v_mul_lo_u32 v6, v6, s24")
        k("v_lshl_add_u32 v6, v4, 4, v6")
        k(f"v_add_u32 v{vA[q]}, s22, v6")
    rpi = 1024 // (BN * 2)
    cpr = BN * 2 // 16
    lgc = cpr.bit_length() - 1
    k(f"v_lshrrev_b32 v3, {lgc}, v2")
    k(f"v_and_b32 v4, {cpr-1}, v2")
    k("v_and_b32 v5, 3, v3")
    k("v_lshlrev_b32 v5, 2, v5")
    k("v_xor_b32 v4, v4, v5")
    k(f"s_mov_b32 s24, {ldb*2}")
    k(f"s_mul_i32 s23, s21, {BN*2}")
    k(f"s_mul_i32 s25, s30, {ndb*rpi*ldb*2}")
    k("s_add_u32 s23, s23, s25")
    vB = [12 + q for q in range(ndb)]
    for q in range(ndb):
        k(f"v_add_u32 v6, {rpi*q}, v3")
        k("v_mul_lo_u32 v6, v6, s24")
        k("v_lshl_add_u32 v6, v4, 4, v6")
        k(f"v_add_u32 v{vB[q]}, s23, v6")
    k(f"s_mul_i32 s31, s30, {nda*1024}")
    k(f"s_mul_i32 s32, s30, {ndb*1024}")
    k(f"s_add_u32 s32, s32, {A_BYTES}")
    if WMW == 2:
        k("v_and_b32 v3, 1, v1")
        k("v_lshrrev_b32 v4, 1, v1")
    else:
        k("v_mov_b32 v3, 0")
        k("v_mov_b32 v4, v1")
    k("v_and_b32 v5, 31, v2")
    k("v_lshrrev_b32 v6, 5, v2")
    k(f"v_mul_u32_u24 v7, {BM//WMW}, v3")
    k("v_add_u32 v7, v7, v5")
    k("v_lshlrev_b32 v7, 6, v7")
    k("v_bfe_u32 v8, v5, 2, 2")
    vFA = [14, 15]
    for ks in range(2):
        k(f"v_add_u32 v9, {2*ks}, v6")
        k("v_xor_b32 v9, v9, v8")
        k(f"v_lshl_add_u32 v{vFA[ks]}, v9, 4, v7")
    k("v_bfe_u32 v7, v2, 2, 2")
    k("v_lshl_add_u32 v8, v6, 3, v7")
    k(f"v_lshlrev_b32 v8, {lgc+4}, v8")
    k("v_bfe_u32 v9, v2, 4, 1")
    k("v_lshl_add_u32 v8, v9, 5, v8")
    k("v_and_b32 v9, 3, v2")
    k("v_lshl_add_u32 v8, v9, 3, v8")
    k(f"v_add_u32 v8, {A_BYTES}, v8")
    vFB = [16 + j for j in range(TNJ)]
    for j in range(TNJ):
        k(f"v_mul_u32_u24 v9, {TNJ}, v4")
        k(f"v_add_u32 v9, {j}, v9")
        k("v_xor_b32 v9, v9, v7")
        k(f"v_lshl_add_u32 v{vFB[j]}, v9, 6, v8")
    FR = 24
    fsz = 4 * (TMI + TNJ)
    ACC = FR + 2 * fsz
    ACC = (ACC + 3) // 4 * 4
    nacc = 16 * TMI * TNJ
    for i in range(nacc):
        k(f"v_mov_b32 v{ACC+i}, 0")
    TAB = NS * STAGE
    CS = ACC + nacc
    if ln_fold:
        XS = CS + 8
        for j in range(TNJ):
            k(f"v_mov_b32 v{CS+j}, 0")
        k("v_lshrrev_b32 v20, 1, v0")
        k("v_and_b32 v21, 1, v0")
        k(f"s_mul_i32 s22, s20, {BM*lda*2}")
        k(f"v_lshlrev_b32 v22, 10, v20")
        k("v_lshl_add_u32 v22, v21, 9, v22")
        k("v_add_u32 v22, s22, v22")
        for c in range(32):
            k(f"buffer_load_dwordx4 v[{XS+4*c}:{XS+4*c+3}], v22, s[{ASRD}:{ASRD+3}], 0 offen offset:{16*c}")

    def dma(stage):
        slot = stage % NS
        for q in range(nda):
            k(f"s_add_u32 m0, s31, {slot*STAGE + q*1024}")
            k(f"s_mov_b32 s26, {A_off + stage*64}")
            k(f"buffer_load_dwordx4 v{vA[q]}, s[{ASRD}:{ASRD+3}], s26 offen lds")
        for q in range(ndb):
            k(f"s_add_u32 m0, s32, {slot*STAGE + q*1024}")
            k(f"s_mov_b32 s26, {stage*32*ldb*2}")
            k(f"buffer_load_dwordx4 v{vB[q]}, s[8:11], s26 offen lds")

    def read_frags(slot, ks, fs):
        f = FR + fs * fsz
        for i in range(TMI):
            k(f"ds_read_b128 v[{f+4*i}:{f+4*i+3}], v{vFA[ks]} offset:{slot*STAGE + i*32*64}")
        for j in range(TNJ):
            for h in range(2):
                r = f + 4 * TMI + 4 * j + 2 * h
                k(f"ds_read_b64_tr_b16 v[{r}:{r+1}], v{vFB[j]} offset:{slot*STAGE + (16*ks+4*h)*BN*2}")

    nrd = TMI + 2 * TNJ
    if ln_fold:
        k("s_mov_b32 s33, 0x3f803f80")
    for s_ in range(min(NS - 1, NKT)):
        dma(s_)
    for it in range(NKT):
        rem = min(NS - 2, NKT - 1 - it)
        k(f"s_waitcnt vmcnt({rem*nd})")
        k("s_barrier")
        if it + NS - 1 < NKT:
            dma(it + NS - 1)
        slot = it % NS
        read_frags(slot, 0, 0)
        read_frags(slot, 1, 1)
        for ks in range(2):
            k(f"s_waitcnt lgkmcnt({nrd if ks == 0 else 0})")
            f = FR + ks * fsz
            for i in range(TMI):
                for j in range(TNJ):
                    acc = ACC + 16 * (i * TNJ + j)
                    k(f"v_mfma_f32_32x32x16_bf16 v[{acc}:{acc+15}], v[{f+4*TMI+4*j}:{f+4*TMI+4*j+3}], "
                      f"v[{f+4*i}:{f+4*i+3}], v[{acc}:{acc+15}]")
            if ln_fold:
                for j in range(TNJ):
                    for r4 in range(4):
                        k(f"v_dot2_f32_bf16 v{CS+j}, v{f+4*TMI+4*j+r4}, s33, v{CS+j}")
    if ln_fold:
        k("s_waitcnt vmcnt(0)")
        k("v_mov_b32 v24, 0")
        k("v_mov_b32 v25, 0")
        for c in range(128):
            k(f"v_dot2_f32_bf16 v24, v{XS+c}, s33, v24")
            k(f"v_dot2_f32_bf16 v25, v{XS+c}, v{XS+c}, v25")
        k(f"ds_swizzle_b32 v26, v24 offset:{(1<<10)|0x1f}")
        k(f"ds_swizzle_b32 v27, v25 offset:{(1<<10)|0x1f}")
        k("s_waitcnt lgkmcnt(0)")
        k("v_add_f32 v24, v24, v26")
        k("v_add_f32 v25, v25, v27")
        k(f"v_mul_f32 v24, {fhex(1.0/512)}, v24")
        k(f"v_mul_f32 v25, {fhex(1.0/512)}, v25")
        k("v_fma_f32 v25, -v24, v24, v25")
        k("v_cvt_pk_bf16_f32 v26, v24, v25")
        k("v_lshlrev_b32 v24, 16, v26")
        k("v_and_b32 v25, 0xffff0000, v26")
        k(f"v_add_f32 v25, {fhex(1e-5)}, v25")
        k("v_cvt_pk_bf16_f32 v26, v25, v25")
        k("v_lshlrev_b32 v25, 16, v26")
        k("v_sqrt_f32 v25, v25")
        k("v_cvt_pk_bf16_f32 v26, v25, v25")
        k("v_lshlrev_b32 v25, 16, v26")
        k("v_rcp_f32 v25, v25")
        k(f"v_lshlrev_b32 v26, 3, v20")
        k(f"v_add_u32 v26, {TAB}, v26")
        k("ds_write_b64 v26, v[24:25]")
        k("v_xor_b32 v26, 32, v2")
        k("v_lshlrev_b32 v26, 2, v26")
        for j in range(TNJ):
            k(f"ds_bpermute_b32 v27, v26, v{CS+j}")
            k("s_waitcnt lgkmcnt(0)")
            k(f"v_add_f32 v{CS+j}, v{CS+j}, v27")
            k(f"v_mul_u32_u24 v27, {TNJ}, v4")
            k(f"v_add_u32 v27, {j}, v27")
            k("v_lshl_add_u32 v27, v27, 5, v5")
            k(f"v_lshlrev_b32 v27, 2, v27")
            k(f"v_add_u32 v27, {TAB+1024}, v27")
            k(f"ds_write_b32 v27, v{CS+j}")
        k("s_waitcnt lgkmcnt(0)")
        k("s_barrier")
    k(f"v_mul_u32_u24 v7, {BM//WMW}, v3")
    k("v_add_u32 v7, v7, v5")
    k(f"s_mul_i32 s22, s20, {BM}")
    k("v_add_u32 v7, s22, v7")
    k(f"s_mov_b32 s24, {ldc*2}")
    k("v_mul_lo_u32 v7, v7, s24")
    k(f"v_mul_u32_u24 v8, {BN//WNW}, v4")
    k("v_lshl_add_u32 v8, v6, 2, v8")
    k(f"s_mul_i32 s23, s21, {BN}")
    k("v_add_u32 v8, s23, v8")
    k("v_lshl_add_u32 v7, v8, 1, v7")
    k(f"s_mov_b32 s27, {fhex(-1.4426950408889634)}")
    T = (XS + 16) if ln_fold else FR
    cnt = 0
    for i in range(TMI):
        for j in range(TNJ):
            acc = ACC + 16 * (i * TNJ + j)
            if ln_fold:
                k(f"v_mul_u32_u24 v26, {BM//WMW}, v3")
                k(f"v_add_u32 v26, {32*i}, v26")
                k("v_add_u32 v26, v26, v5")
                k("v_lshlrev_b32 v26, 3, v26")
                k(f"v_add_u32 v26, {TAB}, v26")
                k(f"ds_read_b64 v[28:29], v26")
            for g in range(4):
                vals = [acc + 4 * g + q for q in range(4)]
                if ln_fold:
                    k(f"v_mul_u32_u24 v26, {TNJ}, v4")
                    k(f"v_add_u32 v26, {j}, v26")
                    k("v_lshlrev_b32 v26, 5, v26")
                    k("v_lshl_add_u32 v26, v6, 2, v26")
                    k(f"v_lshlrev_b32 v26, 2, v26")
                    k(f"v_add_u32 v26, {TAB+1024}, v26")
                    k(f"ds_read_b128 v[32:35], v26 offset:{32*g}")
                    k("s_waitcnt lgkmcnt(0)")
                    for q in range(4):
                        k(f"v_fma_f32 v{vals[q]}, -v28, v{32+q}, v{vals[q]}")
                        k(f"v_mul_f32 v{vals[q]}, v{vals[q]}, v29")
                for p in range(2):
                    t = T + p
                    k(f"v_cvt_pk_bf16_f32 v{t}, v{vals[2*p]}, v{vals[2*p+1]}")
                    k(f"v_lshlrev_b32 v{T+4+2*p}, 16, v{t}")
                    k(f"v_and_b32 v{T+5+2*p}, 0xffff0000, v{t}")
                for q in range(4):
                    k(f"v_mul_f32 v{T+8+q}, s27, v{T+4+q}")
                    k(f"v_exp_f32 v{T+8+q}, v{T+8+q}")
                for q in range(4):
                    k(f"v_add_f32 v{T+8+q}, 1.0, v{T+8+q}")
                    k(f"v_rcp_f32 v{T+8+q}, v{T+8+q}")
                for q in range(4):
                    k(f"v_mul_f32 v{T+4+q}, v{T+4+q}, v{T+8+q}")
                o = T + 12 + 2 * (cnt % 2)
                cnt += 1
                k(f"v_cvt_pk_bf16_f32 v{o}, v{T+4}, v{T+5}")
                k(f"v_cvt_pk_bf16_f32 v{o+1}, v{T+6}, v{T+7}")
                off = C_off + i * 32 * ldc * 2 + (j * 32 + 8 * g) * 2
                k(f"s_mov_b32 s26, {off}")
                k(f"buffer_store_dwordx2 v[{o}:{o+1}], v7, s[12:15], s26 offen")
    k.label(f"Lend_{name}")
    k("s_endpgm")
    nv = ACC + nacc + (8 + 128 if ln_fold else 0)
    return k, nv, 104, NS * STAGE + (2048 if ln_fold else 0)
```

```python
import math
import sys
from asmlib import Kern, Pool, fhex
from fftlib import FFTB

MB = 1 << 20
XN_OFF = 0
YT_OFF = 2 * MB
ZT_OFF = 8 * MB
WT_OFF = 14 * MB
W1T_OFF = 17 * MB
W2T_OFF = 19 * MB
H_OFF = 21 * MB
G_OFF = 28 * MB
WS_BYTES = 268435456

S, D, F = 2048, 512, 1376
FP = 1408

KA_X, KA_WR, KA_WI, KA_BX, KA_W1, KA_W2, KA_OUT, KA_DBG, KA_WS = [8 * i for i in range(9)]


def srd(k, s, sptr, nbytes):
    k(f"s_mov_b32 s{s}, s{sptr}")
    k(f"s_and_b32 s{s+1}, s{sptr+1}, 0xffff")
    k(f"s_mov_b32 s{s+2}, {nbytes}")
    k(f"s_mov_b32 s{s+3}, 0x00020000")


def wave_sum(k, pool, vals, vperm32):
    for m in (1, 2, 4, 8, 16):
        off = (m << 10) | 0x1F
        tmps = [pool.alloc() for _ in vals]
        for v, t in zip(vals, tmps):
            k(f"ds_swizzle_b32 v{t}, v{v} offset:{off}")
        k("s_waitcnt lgkmcnt(0)")
        for v, t in zip(vals, tmps):
            k(f"v_add_f32 v{v}, v{v}, v{t}")
        pool.free(tmps)
    tmps = [pool.alloc() for _ in vals]
    for v, t in zip(vals, tmps):
        k(f"ds_bpermute_b32 v{t}, v{vperm32}, v{v}")
    k("s_waitcnt lgkmcnt(0)")
    for v, t in zip(vals, tmps):
        k(f"v_add_f32 v{v}, v{v}, v{t}")
    pool.free(tmps)


def bf16_round_pair(k, pool, a, b):
    t = pool.alloc()
    k(f"v_cvt_pk_bf16_f32 v{t}, v{a}, v{b}")
    k(f"v_lshlrev_b32 v{a}, 16, v{t}")
    k(f"v_and_b32 v{b}, 0xffff0000, v{t}")
    pool.free(t)


def gen_transpose_role(k, tag, wg0, ntr, ntc, src_srds, src_pitch, ncols_src, dst_off, dst_pitch_elems,
                       dst_rows_valid, packed):
    esz = 4 if packed else 2
    k(f"s_sub_u32 s20, s2, {wg0}")
    if ntr & (ntr - 1) == 0:
        lg = ntr.bit_length() - 1
        k(f"s_and_b32 s21, s20, {ntr-1}")
        k(f"s_lshr_b32 s22, s20, {lg}")
    else:
        magic = (1 << 32) // ntr + 1
        k(f"s_mul_hi_u32 s22, s20, {magic}")
        k(f"s_mul_i32 s23, s22, {ntr}")
        k(f"s_sub_u32 s21, s20, s23")
    k("s_lshl_b32 s21, s21, 6")
    k("s_lshl_b32 s22, s22, 6")
    k("v_and_b32 v1, 63, v0")
    k("v_lshrrev_b32 v2, 6, v0")
    k("v_lshlrev_b32 v3, 4, v2")
    k("v_add_u32 v3, s21, v3")
    k(f"s_mov_b32 s23, {src_pitch}")
    k("v_mul_lo_u32 v3, v3, s23")
    k("v_add_u32 v4, s22, v1")
    k("v_lshl_add_u32 v3, v4, 1, v3")
    k(f"v_cmp_gt_u32 vcc, {ncols_src}, v4")
    nsrc = len(src_srds)
    base = 8
    for a, sr in enumerate(src_srds):
        for i in range(16):
            k(f"s_mov_b32 s24, {i*src_pitch}")
            k(f"buffer_load_ushort v{base + a*16 + i}, v3, s[{sr}:{sr+3}], s24 offen")
    k("s_waitcnt vmcnt(0)")
    for a in range(nsrc):
        for i in range(16):
            r = base + a * 16 + i
            k(f"v_cndmask_b32 v{r}, 0, v{r}, vcc")
    if packed:
        for i in range(16):
            k(f"v_lshl_or_b32 v{base+i}, v{base+16+i}, 16, v{base+i}")
    k("v_mul_u32_u24 v5, 65, v1")
    k("v_lshl_add_u32 v5, v2, 4, v5")
    k("v_lshlrev_b32 v5, 2, v5")
    for i in range(16):
        k(f"ds_write_b32 v5, v{base+i} offset:{4*i}")
    k("s_waitcnt lgkmcnt(0)")
    k("s_barrier")
    k("v_mul_u32_u24 v6, 65, v2")
    k("v_lshlrev_b32 v6, 4, v6")
    k("v_add_u32 v6, v6, v1")
    k("v_lshlrev_b32 v6, 2, v6")
    for i in range(16):
        k(f"ds_read_b32 v{base+i}, v6 offset:{4*65*i}")
    k("v_lshlrev_b32 v7, 4, v2")
    k("v_add_u32 v7, s22, v7")
    k(f"s_mov_b32 s23, {dst_pitch_elems}")
    k("v_mul_lo_u32 v7, v7, s23")
    k("v_add_u32 v7, v7, v1")
    k("v_add_u32 v7, s21, v7")
    k(f"v_lshlrev_b32 v7, {2 if packed else 1}, v7")
    k("s_waitcnt lgkmcnt(0)")
    done = k.newlabel("Ltd" + tag)
    k("v_readfirstlane_b32 s25, v2")
    k("s_lshl_b32 s25, s25, 4")
    k("s_add_u32 s25, s25, s22")
    for i in range(16):
        k(f"s_add_u32 s26, s25, {i}")
        k(f"s_cmp_ge_u32 s26, {dst_rows_valid}")
        k(f"s_cbranch_scc1 {done}")
        k(f"s_mov_b32 s24, {dst_off + i*dst_pitch_elems*esz}")
        if packed:
            k(f"buffer_store_dword v{base+i}, v7, s[12:15], s24 offen")
        else:
            k(f"buffer_store_short v{base+i}, v7, s[12:15], s24 offen")
    k.label(done)
    k("s_endpgm")


NWG_FFT1 = 256
NT_W = 32 * 5
NT_W1 = 8 * 22
NT_W2 = 22 * 8
K1_WGS = NWG_FFT1 + NT_W


def gen_k1():
    k = Kern("k1")
    k(f"s_cmp_ge_u32 s2, {K1_WGS}")
    k("s_cbranch_scc1 Lend_k1")
    k(f"s_load_dwordx2 s[4:5], s[0:1], {KA_X}")
    k(f"s_load_dwordx2 s[6:7], s[0:1], {KA_WS}")
    k(f"s_load_dwordx4 s[28:31], s[0:1], {KA_WR}")
    k(f"s_load_dwordx4 s[32:35], s[0:1], {KA_W1}")
    k("s_waitcnt lgkmcnt(0)")
    srd(k, 8, 4, S * D * 2)
    srd(k, 12, 6, WS_BYTES)
    k(f"s_cmp_ge_u32 s2, {NWG_FFT1}")
    k("s_cbranch_scc1 Ltrans_k1")
    pool = Pool(range(8, 128))
    fb = FFTB(k, pool, "s16")
    k(f"s_mov_b32 s16, {fhex(math.sqrt(0.5))}")
    k("v_and_b32 v1, 63, v0")
    k("v_lshrrev_b32 v2, 6, v0")
    k("s_lshl_b32 s17, s2, 13")
    k("v_lshlrev_b32 v3, 11, v2")
    k("v_lshl_add_u32 v3, v1, 1, v3")
    k("v_add_u32 v3, s17, v3")
    k("v_xor_b32 v4, 32, v1")
    k("v_lshlrev_b32 v4, 2, v4")
    k("v_lshlrev_b32 v5, 12, v2")
    a = [pool.alloc() for _ in range(8)]
    b = [pool.alloc() for _ in range(8)]
    for j in range(8):
        k(f"buffer_load_ushort v{a[j]}, v3, s[8:11], 0 offen offset:{128*j}")
    for j in range(8):
        k(f"buffer_load_ushort v{b[j]}, v3, s[8:11], 0 offen offset:{1024+128*j}")
    k("s_waitcnt vmcnt(0)")
    for j in range(8):
        k(f"v_lshlrev_b32 v{a[j]}, 16, v{a[j]}")
        k(f"v_lshlrev_b32 v{b[j]}, 16, v{b[j]}")
    sa = pool.alloc()
    sb = pool.alloc()
    k(f"v_add_f32 v{sa}, v{a[0]}, v{a[1]}")
    k(f"v_add_f32 v{sb}, v{b[0]}, v{b[1]}")
    for j in range(2, 8):
        k(f"v_add_f32 v{sa}, v{sa}, v{a[j]}")
        k(f"v_add_f32 v{sb}, v{sb}, v{b[j]}")
    wave_sum(k, pool, [sa, sb], 4)
    k(f"v_mul_f32 v{sa}, {fhex(1.0/512)}, v{sa}")
    k(f"v_mul_f32 v{sb}, {fhex(1.0/512)}, v{sb}")
    qa = pool.alloc()
    qb = pool.alloc()
    t = pool.alloc()
    k(f"v_mov_b32 v{qa}, 0")
    k(f"v_mov_b32 v{qb}, 0")
    for j in range(8):
        k(f"v_sub_f32 v{t}, v{a[j]}, v{sa}")
        k(f"v_fma_f32 v{qa}, v{t}, v{t}, v{qa}")
        k(f"v_sub_f32 v{t}, v{b[j]}, v{sb}")
        k(f"v_fma_f32 v{qb}, v{t}, v{t}, v{qb}")
    pool.free(t)
    wave_sum(k, pool, [qa, qb], 4)
    k(f"v_mul_f32 v{qa}, {fhex(1.0/512)}, v{qa}")
    k(f"v_mul_f32 v{qb}, {fhex(1.0/512)}, v{qb}")
    bf16_round_pair(k, pool, sa, sb)
    bf16_round_pair(k, pool, qa, qb)
    k(f"v_add_f32 v{qa}, {fhex(1e-5)}, v{qa}")
    k(f"v_add_f32 v{qb}, {fhex(1e-5)}, v{qb}")
    bf16_round_pair(k, pool, qa, qb)
    k(f"v_sqrt_f32 v{qa}, v{qa}")
    k(f"v_sqrt_f32 v{qb}, v{qb}")
    bf16_round_pair(k, pool, qa, qb)
    k(f"v_rcp_f32 v{qa}, v{qa}")
    k(f"v_rcp_f32 v{qb}, v{qb}")
    pk = [pool.alloc() for _ in range(8)]
    for j in range(8):
        k(f"v_sub_f32 v{a[j]}, v{a[j]}, v{sa}")
        k(f"v_sub_f32 v{b[j]}, v{b[j]}, v{sb}")
        bf16_round_pair(k, pool, a[j], b[j])
        k(f"v_mul_f32 v{a[j]}, v{a[j]}, v{qa}")
        k(f"v_mul_f32 v{b[j]}, v{b[j]}, v{qb}")
        k(f"v_cvt_pk_bf16_f32 v{pk[j]}, v{a[j]}, v{b[j]}")
        k(f"v_lshlrev_b32 v{a[j]}, 16, v{pk[j]}")
        k(f"v_and_b32 v{b[j]}, 0xffff0000, v{pk[j]}")
    pool.free(pk)
    pool.free([sa, sb, qa, qb])
    x = [(a[j], b[j]) for j in range(8)]
    vrd = pool.alloc()
    k(f"v_lshl_add_u32 v{vrd}, v1, 3, v5")
    outs = [pool.alloc_n(2, 2) for _ in range(8)]
    X = fb.radix8(x, False, [(o, o + 1) for o in outs])
    vw = pool.alloc()
    k(f"v_lshl_add_u32 v{vw}, v1, 6, v5")
    for r in range(8):
        k(f"ds_write_b64 v{vw}, v[{outs[r]}:{outs[r]+1}] offset:{8*r}")
    k("s_waitcnt lgkmcnt(0)")
    ins = outs
    for r in range(8):
        k(f"ds_read_b64 v[{ins[r]}:{ins[r]+1}], v{vrd} offset:{512*r}")
    k("s_waitcnt lgkmcnt(0)")
    x = [(ins[r], ins[r] + 1) for r in range(8)]
    vk = pool.alloc()
    k(f"v_and_b32 v{vk}, 7, v1")
    x = fb.twiddle(x, vk, -1.0 / 64, 8)
    outs = [pool.alloc_n(2, 2) for _ in range(8)]
    X = fb.radix8(x, False, [(o, o + 1) for o in outs])
    k(f"v_lshrrev_b32 v{vw}, 3, v1")
    k(f"v_lshl_add_u32 v{vw}, v{vw}, 9, v5")
    k(f"v_lshl_add_u32 v{vw}, v{vk}, 3, v{vw}")
    for r in range(8):
        k(f"ds_write_b64 v{vw}, v[{outs[r]}:{outs[r]+1}] offset:{64*r}")
    k("s_waitcnt lgkmcnt(0)")
    ins = outs
    for r in range(8):
        k(f"ds_read_b64 v[{ins[r]}:{ins[r]+1}], v{vrd} offset:{512*r}")
    k("s_waitcnt lgkmcnt(0)")
    x = [(ins[r], ins[r] + 1) for r in range(8)]
    x = fb.twiddle(x, 1, -1.0 / 512, 8)
    outs = [pool.alloc_n(2, 2) for _ in range(8)]
    X = fb.radix8(x, False, [(o, o + 1) for o in outs])
    for r in range(8):
        k(f"ds_write_b64 v{vrd}, v[{outs[r]}:{outs[r]+1}] offset:{512*r}")
    k("s_waitcnt lgkmcnt(0)")
    k("s_barrier")
    for o in outs:
        pool.free_n(o, 2)
    vq = pool.alloc()
    vkb = pool.alloc()
    k(f"v_and_b32 v{vq}, 3, v0")
    k(f"v_lshrrev_b32 v{vkb}, 2, v0")
    vqb = pool.alloc()
    k(f"v_lshlrev_b32 v{vqb}, 12, v{vq}")
    vg = pool.alloc()
    k(f"v_lshlrev_b32 v{vg}, 4, v{vq}")
    k("s_lshl_b32 s17, s2, 6")
    k(f"v_add_u32 v{vg}, s17, v{vg}")
    k(f"v_lshl_add_u32 v{vg}, v{vkb}, 14, v{vg}")
    half = fhex(0.5)

    def unpack_store(kreg, it_off_g, guard=None):
        za = pool.alloc_n(2, 2)
        zm = pool.alloc_n(2, 2)
        ad = pool.alloc()
        am = pool.alloc()
        k(f"v_lshl_add_u32 v{ad}, v{kreg}, 3, v{vqb}")
        k(f"v_sub_u32 v{am}, 512, v{kreg}")
        k(f"v_and_b32 v{am}, 511, v{am}")
        k(f"v_lshl_add_u32 v{am}, v{am}, 3, v{vqb}")
        k(f"ds_read_b64 v[{za}:{za+1}], v{ad}")
        k(f"ds_read_b64 v[{zm}:{zm+1}], v{am}")
        o = pool.alloc_n(4, 4)
        k("s_waitcnt lgkmcnt(0)")
        k(f"v_add_f32 v{o}, v{za}, v{zm}")
        k(f"v_sub_f32 v{o+1}, v{za+1}, v{zm+1}")
        k(f"v_add_f32 v{o+2}, v{za+1}, v{zm+1}")
        k(f"v_sub_f32 v{o+3}, v{zm}, v{za}")
        for i in range(4):
            k(f"v_mul_f32 v{o+i}, 0.5, v{o+i}")
        return o, [za, zm, ad, am]

    for it in range(4):
        kr = pool.alloc()
        k(f"v_add_u32 v{kr}, {64*it}, v{vkb}")
        o, tmp = unpack_store(kr, 0)
        k(f"s_mov_b32 s18, {YT_OFF + it*64*16384}")
        k(f"buffer_store_dwordx4 v[{o}:{o+3}], v{vg}, s[12:15], s18 offen")
        pool.free(kr)
        pool.free_n(tmp[0], 2)
        pool.free_n(tmp[1], 2)
        pool.free(tmp[2])
        pool.free(tmp[3])
        pool.free_n(o, 4)
    k("v_cmp_gt_u32 vcc, 4, v0")
    k("s_and_saveexec_b64 s[20:21], vcc")
    k("s_cbranch_execz Lskip256_k1")
    kr = pool.alloc()
    k(f"v_mov_b32 v{kr}, 256")
    o, tmp = unpack_store(kr, 0)
    vg2 = pool.alloc()
    k(f"v_lshlrev_b32 v{vg2}, 4, v{vq}")
    k(f"v_add_u32 v{vg2}, s17, v{vg2}")
    k(f"s_mov_b32 s18, {YT_OFF + 256*16384}")
    k(f"buffer_store_dwordx4 v[{o}:{o+3}], v{vg2}, s[12:15], s18 offen")
    k.label("Lskip256_k1")
    k("s_endpgm")
    k.label("Ltrans_k1")
    k(f"s_cmp_ge_u32 s2, {NWG_FFT1 + NT_W}")
    k("s_cbranch_scc1 Ltrans2_k1")
    srd(k, 36, 28, 2048 * 257 * 2)
    srd(k, 40, 30, 2048 * 257 * 2)
    gen_transpose_role(k, "w", NWG_FFT1, 32, 5, [36, 40], 514, 257, WT_OFF, 2048, 257, True)
    k.label("Ltrans2_k1")
    k.label("Lend_k1")
    k("s_endpgm")
    return k, 128, 104, 16384 + 1024


K2_WGS = 257


def gen_k2():
    k = Kern("k2")
    k(f"s_cmp_ge_u32 s2, {K2_WGS}")
    k("s_cbranch_scc1 Lend_k2")
    k(f"s_load_dwordx2 s[6:7], s[0:1], {KA_WS}")
    k("s_waitcnt lgkmcnt(0)")
    srd(k, 12, 6, WS_BYTES)
    pool = Pool(range(8, 200))
    fb = FFTB(k, pool, "s16")
    k(f"s_mov_b32 s16, {fhex(math.sqrt(0.5))}")
    k("s_lshl_b32 s17, s2, 14")
    k("v_lshlrev_b32 v1, 3, v0")
    k("v_add_u32 v1, s17, v1")
    ins = [pool.alloc_n(2, 2) for _ in range(8)]
    for m in range(8):
        k(f"s_mov_b32 s18, {YT_OFF + 2048*m}")
        k(f"buffer_load_dwordx2 v[{ins[m]}:{ins[m]+1}], v1, s[12:15], s18 offen")
    wv = [pool.alloc() for _ in range(8)]
    k("s_lshl_b32 s17, s2, 13")
    k("v_lshlrev_b32 v2, 2, v0")
    k("v_add_u32 v2, s17, v2")
    for m in range(8):
        k(f"s_mov_b32 s19, {WT_OFF + 1024*m}")
        k(f"buffer_load_dword v{wv[m]}, v2, s[12:15], s19 offen")
    k("v_lshlrev_b32 v3, 3, v0")
    k("s_waitcnt vmcnt(8)")
    x = [(ins[m], ins[m] + 1) for m in range(8)]
    LDSB = [0, 16384]

    def fft2048(x, inv, first_buf):
        sg = 1.0 if inv else -1.0
        buf = first_buf
        vw = pool.alloc()
        vk = pool.alloc()
        outs = [pool.alloc_n(2, 2) for _ in range(8)]
        fb.radix8(x, inv, [(o, o + 1) for o in outs])
        k(f"v_lshlrev_b32 v{vw}, 6, v0")
        for r in range(8):
            k(f"ds_write_b64 v{vw}, v[{outs[r]}:{outs[r]+1}] offset:{LDSB[buf] + 8*r}")
        k("s_waitcnt lgkmcnt(0)")
        k("s_barrier")
        for r in range(8):
            k(f"ds_read_b64 v[{outs[r]}:{outs[r]+1}], v3 offset:{LDSB[buf] + 2048*r}")
        k("s_waitcnt lgkmcnt(0)")
        x = [(o, o + 1) for o in outs]
        buf ^= 1
        for Ns in (8, 64):
            k(f"v_and_b32 v{vk}, {Ns-1}, v0")
            x = fb.twiddle(x, vk, sg / (Ns * 8), 8)
            outs = [pool.alloc_n(2, 2) for _ in range(8)]
            fb.radix8(x, inv, [(o, o + 1) for o in outs])
            lg = Ns.bit_length() - 1
            k(f"v_lshrrev_b32 v{vw}, {lg}, v0")
            k(f"v_lshlrev_b32 v{vw}, {lg+3+3}, v{vw}")
            k(f"v_lshl_add_u32 v{vw}, v{vk}, 3, v{vw}")
            for r in range(8):
                k(f"ds_write_b64 v{vw}, v[{outs[r]}:{outs[r]+1}] offset:{LDSB[buf] + 8*Ns*r}")
            k("s_waitcnt lgkmcnt(0)")
            k("s_barrier")
            for r in range(8):
                k(f"ds_read_b64 v[{outs[r]}:{outs[r]+1}], v3 offset:{LDSB[buf] + 2048*r}")
            k("s_waitcnt lgkmcnt(0)")
            x = [(o, o + 1) for o in outs]
            buf ^= 1
        res = [None] * 8
        for h in range(2):
            xx = [x[2 * r + h] for r in range(4)]
            if h == 0:
                k(f"v_mov_b32 v{vk}, v0")
            else:
                k(f"v_add_u32 v{vk}, 256, v0")
            xx = fb.twiddle(xx, vk, sg / 2048.0, 4)
            Y = fb.radix4(xx, inv)
            for r in range(4):
                res[2 * r + h] = Y[r]
        pool.free(vw)
        pool.free(vk)
        return res, buf

    X, buf = fft2048(x, False, 0)
    k("s_waitcnt vmcnt(0)")
    sc = fhex(1.0 / (2048.0 * 512.0))
    for m in range(8):
        c = pool.alloc()
        s_ = pool.alloc()
        k(f"v_lshlrev_b32 v{c}, 16, v{wv[m]}")
        k(f"v_and_b32 v{s_}, 0xffff0000, v{wv[m]}")
        k(f"v_mul_f32 v{c}, {sc}, v{c}")
        k(f"v_mul_f32 v{s_}, {sc}, v{s_}")
        X[m] = fb.cmul(X[m], c, s_)
        pool.free(c)
        pool.free(s_)
    pool.free(wv)
    Z, buf = fft2048(X, True, buf)
    for m in range(8):
        o = pool.alloc_n(2, 2)
        k(f"v_mov_b32 v{o}, v{Z[m][0]}")
        k(f"v_mov_b32 v{o+1}, v{Z[m][1]}")
        k(f"s_mov_b32 s18, {ZT_OFF + 2048*m}")
        k(f"buffer_store_dwordx2 v[{o}:{o+1}], v1, s[12:15], s18 offen")
    k.label("Lend_k2")
    k("s_endpgm")
    return k, 200, 104, 32768


K4_WGS = 256


def gen_k4():
    k = Kern("k4")
    k(f"s_cmp_ge_u32 s2, {K4_WGS}")
    k("s_cbranch_scc1 Lend_k4")
    k(f"s_load_dwordx2 s[4:5], s[0:1], {KA_X}")
    k(f"s_load_dwordx2 s[6:7], s[0:1], {KA_WS}")
    k(f"s_load_dwordx2 s[28:29], s[0:1], {KA_OUT}")
    k("s_waitcnt lgkmcnt(0)")
    srd(k, 8, 4, S * D * 2)
    srd(k, 12, 6, WS_BYTES)
    srd(k, 32, 28, S * D * 2)
    pool = Pool(range(8, 160))
    fb = FFTB(k, pool, "s16")
    k(f"s_mov_b32 s16, {fhex(math.sqrt(0.5))}")
    AB_STRIDE = 4352
    k("v_and_b32 v1, 63, v0")
    k("v_lshrrev_b32 v2, 6, v0")
    vq = pool.alloc()
    vkb = pool.alloc()
    k(f"v_and_b32 v{vq}, 3, v0")
    k(f"v_lshrrev_b32 v{vkb}, 2, v0")
    vg = pool.alloc()
    k(f"v_lshlrev_b32 v{vg}, 4, v{vq}")
    k("s_lshl_b32 s17, s2, 6")
    k(f"v_add_u32 v{vg}, s17, v{vg}")
    vg2 = pool.alloc()
    k(f"v_mov_b32 v{vg2}, v{vg}")
    k(f"v_lshl_add_u32 v{vg}, v{vkb}, 14, v{vg}")
    ld = [pool.alloc_n(4, 4) for _ in range(4)]
    for it in range(4):
        k(f"s_mov_b32 s18, {ZT_OFF + it*64*16384}")
        k(f"buffer_load_dwordx4 v[{ld[it]}:{ld[it]+3}], v{vg}, s[12:15], s18 offen")
    l256 = pool.alloc_n(4, 4)
    k(f"s_mov_b32 s18, {ZT_OFF + 256*16384}")
    k(f"buffer_load_dwordx4 v[{l256}:{l256+3}], v{vg2}, s[12:15], s18 offen")
    vl = pool.alloc()
    k(f"v_mul_u32_u24 v{vl}, {AB_STRIDE}, v{vq}")
    vl2 = pool.alloc()
    k(f"v_add_u32 v{vl2}, {256*16}, v{vl}")
    k(f"v_lshl_add_u32 v{vl}, v{vkb}, 4, v{vl}")
    k("s_waitcnt vmcnt(0)")
    k(f"v_cmp_eq_u32 vcc, 0, v{vkb}")
    k(f"v_cndmask_b32 v{ld[0]+1}, v{ld[0]+1}, 0, vcc")
    k(f"v_cndmask_b32 v{ld[0]+3}, v{ld[0]+3}, 0, vcc")
    k(f"v_mov_b32 v{l256+1}, 0")
    k(f"v_mov_b32 v{l256+3}, 0")
    for it in range(4):
        k(f"ds_write_b128 v{vl}, v[{ld[it]}:{ld[it]+3}] offset:{it*1024}")
    k(f"ds_write_b128 v{vl2}, v[{l256}:{l256+3}]")
    k("s_waitcnt lgkmcnt(0)")
    k("s_barrier")
    for r_ in ld:
        pool.free_n(r_, 4)
    pool.free_n(l256, 4)
    pool.free([vq, vkb, vg, vg2, vl, vl2])
    vab = pool.alloc()
    k(f"v_mul_u32_u24 v{vab}, {AB_STRIDE}, v2")
    x = []
    tmp4 = [pool.alloc_n(4, 4) for _ in range(8)]
    for j in range(8):
        ad = pool.alloc()
        if j < 4:
            k(f"v_add_u32 v{ad}, {64*j}, v1")
        else:
            k(f"v_sub_u32 v{ad}, {512-64*j}, v1")
        k(f"v_lshl_add_u32 v{ad}, v{ad}, 4, v{vab}")
        k(f"ds_read_b128 v[{tmp4[j]}:{tmp4[j]+3}], v{ad}")
        pool.free(ad)
    k("s_waitcnt lgkmcnt(0)")
    for j in range(8):
        o = tmp4[j]
        re = pool.alloc()
        im = pool.alloc()
        if j < 4:
            k(f"v_sub_f32 v{re}, v{o}, v{o+3}")
            k(f"v_add_f32 v{im}, v{o+1}, v{o+2}")
        else:
            k(f"v_add_f32 v{re}, v{o}, v{o+3}")
            k(f"v_sub_f32 v{im}, v{o+2}, v{o+1}")
        x.append((re, im))
    for o in tmp4:
        pool.free_n(o, 4)
    vrd = pool.alloc()
    k(f"v_lshl_add_u32 v{vrd}, v1, 3, v{vab}")
    vw = pool.alloc()
    vk = pool.alloc()
    outs = [pool.alloc_n(2, 2) for _ in range(8)]
    fb.radix8(x, True, [(o, o + 1) for o in outs])
    k(f"v_lshl_add_u32 v{vw}, v1, 6, v{vab}")
    k("s_waitcnt lgkmcnt(0)")
    for r in range(8):
        k(f"ds_write_b64 v{vw}, v[{outs[r]}:{outs[r]+1}] offset:{8*r}")
    k("s_waitcnt lgkmcnt(0)")
    for r in range(8):
        k(f"ds_read_b64 v[{outs[r]}:{outs[r]+1}], v{vrd} offset:{512*r}")
    k("s_waitcnt lgkmcnt(0)")
    x = [(o, o + 1) for o in outs]
    k(f"v_and_b32 v{vk}, 7, v1")
    x = fb.twiddle(x, vk, 1.0 / 64, 8)
    outs = [pool.alloc_n(2, 2) for _ in range(8)]
    fb.radix8(x, True, [(o, o + 1) for o in outs])
    k(f"v_lshrrev_b32 v{vw}, 3, v1")
    k(f"v_lshl_add_u32 v{vw}, v{vw}, 9, v{vab}")
    k(f"v_lshl_add_u32 v{vw}, v{vk}, 3, v{vw}")
    for r in range(8):
        k(f"ds_write_b64 v{vw}, v[{outs[r]}:{outs[r]+1}] offset:{64*r}")
    k("s_waitcnt lgkmcnt(0)")
    for r in range(8):
        k(f"ds_read_b64 v[{outs[r]}:{outs[r]+1}], v{vrd} offset:{512*r}")
    k("s_waitcnt lgkmcnt(0)")
    x = [(o, o + 1) for o in outs]
    x = fb.twiddle(x, 1, 1.0 / 512, 8)
    z = fb.radix8(x, True)
    k("s_lshl_b32 s17, s2, 13")
    k("v_lshlrev_b32 v3, 11, v2")
    k("v_lshl_add_u32 v3, v1, 1, v3")
    k("v_add_u32 v3, s17, v3")
    xa = [pool.alloc() for _ in range(8)]
    xb = [pool.alloc() for _ in range(8)]
    ga = [pool.alloc() for _ in range(8)]
    gb = [pool.alloc() for _ in range(8)]
    k(f"s_mov_b32 s18, {G_OFF}")
    for j in range(8):
        k(f"buffer_load_ushort v{xa[j]}, v3, s[8:11], 0 offen offset:{128*j}")
        k(f"buffer_load_ushort v{xb[j]}, v3, s[8:11], 0 offen offset:{1024+128*j}")
        k(f"buffer_load_ushort v{ga[j]}, v3, s[12:15], s18 offen offset:{128*j}")
        k(f"buffer_load_ushort v{gb[j]}, v3, s[12:15], s18 offen offset:{1024+128*j}")
    k("s_waitcnt vmcnt(0)")
    for j in range(8):
        sa, sb = z[j]
        bf16_round_pair(k, pool, sa, sb)
        k(f"v_lshlrev_b32 v{ga[j]}, 16, v{ga[j]}")
        k(f"v_lshlrev_b32 v{gb[j]}, 16, v{gb[j]}")
        k(f"v_lshlrev_b32 v{xa[j]}, 16, v{xa[j]}")
        k(f"v_lshlrev_b32 v{xb[j]}, 16, v{xb[j]}")
        k(f"v_mul_f32 v{sa}, v{sa}, v{ga[j]}")
        k(f"v_mul_f32 v{sb}, v{sb}, v{gb[j]}")
        bf16_round_pair(k, pool, sa, sb)
        k(f"v_add_f32 v{sa}, v{sa}, v{xa[j]}")
        k(f"v_add_f32 v{sb}, v{sb}, v{xb[j]}")
        k(f"v_cvt_pk_bf16_f32 v{xa[j]}, v{sa}, v{sb}")
        k(f"buffer_store_short v{xa[j]}, v3, s[32:35], 0 offen offset:{128*j}")
        k(f"buffer_store_short_d16_hi v{xa[j]}, v3, s[32:35], 0 offen offset:{1024+128*j}")
    k.label("Lend_k4")
    k("s_endpgm")
    return k, 160, 104, 4 * AB_STRIDE


def gen_gemm(name, A_off, lda, B_off, ldb, C_off, ldc, Kdim, MT, NT):
    k = Kern(name)
    NWG = MT * NT
    NK = Kdim // 64
    assert NK % 2 == 0
    k(f"s_cmp_ge_u32 s2, {NWG}")
    k(f"s_cbranch_scc1 Lend_{name}")
    k(f"s_load_dwordx2 s[6:7], s[0:1], {KA_WS}")
    k("s_waitcnt lgkmcnt(0)")
    srd(k, 12, 6, WS_BYTES)
    lg = MT.bit_length() - 1
    k(f"s_and_b32 s20, s2, {MT-1}")
    k(f"s_lshr_b32 s21, s2, {lg}")
    PITCH = 144
    TILE_B = 128 * PITCH
    BUF = [0, 2 * TILE_B]
    k("v_lshrrev_b32 v1, 3, v0")
    k("v_and_b32 v2, 7, v0")
    k(f"s_mul_i32 s22, s20, {128*lda*2}")
    k(f"s_mul_i32 s23, s21, {128*ldb*2}")
    k(f"s_mov_b32 s24, {lda*2}")
    k(f"s_mov_b32 s25, {ldb*2}")
    k("v_mul_lo_u32 v3, v1, s24")
    k("v_lshl_add_u32 v3, v2, 4, v3")
    k("v_add_u32 v3, s22, v3")
    k("v_mul_lo_u32 v4, v1, s25")
    k("v_lshl_add_u32 v4, v2, 4, v4")
    k("v_add_u32 v4, s23, v4")
    k(f"v_mul_u32_u24 v5, {PITCH}, v1")
    k("v_lshl_add_u32 v5, v2, 4, v5")
    k("v_lshrrev_b32 v6, 6, v0")
    k("v_and_b32 v7, 63, v0")
    k("v_and_b32 v8, 31, v7")
    k("v_lshrrev_b32 v9, 5, v7")
    k("v_and_b32 v10, 1, v6")
    k("v_lshrrev_b32 v11, 1, v6")
    k("v_lshl_add_u32 v12, v10, 6, v8")
    k(f"v_mul_u32_u24 v12, {PITCH}, v12")
    k("v_lshl_add_u32 v12, v9, 4, v12")
    k("v_lshl_add_u32 v13, v11, 6, v8")
    k(f"v_mul_u32_u24 v13, {PITCH}, v13")
    k("v_lshl_add_u32 v13, v9, 4, v13")
    k(f"v_add_u32 v13, {TILE_B}, v13")
    k(f"v_add_u32 v144, {BUF[1]}, v5")
    k(f"v_add_u32 v145, {BUF[1]}, v12")
    k(f"v_add_u32 v146, {BUF[1]}, v13")
    G = 16
    FR = 48
    ACC = 80
    for i in range(64):
        k(f"v_mov_b32 v{ACC+i}, 0")
    def issue_loads(ktile):
        for i in range(4):
            k(f"s_mov_b32 s26, {A_off + i*32*lda*2 + ktile*128}")
            k(f"buffer_load_dwordx4 v[{G+4*i}:{G+4*i+3}], v3, s[12:15], s26 offen")
        for i in range(4):
            k(f"s_mov_b32 s26, {B_off + i*32*ldb*2 + ktile*128}")
            k(f"buffer_load_dwordx4 v[{G+16+4*i}:{G+16+4*i+3}], v4, s[12:15], s26 offen")

    def write_lds(buf):
        av = 5 if buf == 0 else 144
        for i in range(4):
            k(f"ds_write_b128 v{av}, v[{G+4*i}:{G+4*i+3}] offset:{i*32*PITCH}")
        for i in range(4):
            k(f"ds_write_b128 v{av}, v[{G+16+4*i}:{G+16+4*i+3}] offset:{TILE_B + i*32*PITCH}")

    def read_frags(buf, ks, fs):
        f = FR + 16 * fs
        va = 12 if buf == 0 else 145
        vb = 13 if buf == 0 else 146
        for i in range(2):
            k(f"ds_read_b128 v[{f+4*i}:{f+4*i+3}], v{va} offset:{i*32*PITCH + ks*32}")
        for j in range(2):
            k(f"ds_read_b128 v[{f+8+4*j}:{f+8+4*j+3}], v{vb} offset:{j*32*PITCH + ks*32}")

    def compute(buf):
        read_frags(buf, 0, 0)
        for ks in range(4):
            if ks < 3:
                read_frags(buf, ks + 1, (ks + 1) % 2)
                k("s_waitcnt lgkmcnt(4)")
            else:
                k("s_waitcnt lgkmcnt(0)")
            f = FR + 16 * (ks % 2)
            for i in range(2):
                for j in range(2):
                    acc = ACC + 16 * (2 * i + j)
                    k(f"v_mfma_f32_32x32x16_bf16 v[{acc}:{acc+15}], v[{f+8+4*j}:{f+8+4*j+3}], "
                      f"v[{f+4*i}:{f+4*i+3}], v[{acc}:{acc+15}]")

    issue_loads(0)
    k("s_waitcnt vmcnt(0)")
    write_lds(0)
    issue_loads(1)
    k("s_waitcnt lgkmcnt(0)")
    k("s_barrier")
    for it in range(NK):
        buf = it % 2
        compute(buf)
        if it + 1 < NK:
            k("s_waitcnt vmcnt(0)")
            write_lds(buf ^ 1)
            if it + 2 < NK:
                issue_loads(it + 2)
            k("s_waitcnt lgkmcnt(0)")
            k("s_barrier")
    k("v_lshl_add_u32 v14, v10, 6, v8")
    k("s_lshl_b32 s22, s20, 7")
    k("v_add_u32 v14, s22, v14")
    k(f"s_mov_b32 s24, {ldc*2}")
    k("v_mul_lo_u32 v14, v14, s24")
    k("v_lshlrev_b32 v15, 6, v11")
    k("v_lshl_add_u32 v15, v9, 2, v15")
    k("s_lshl_b32 s23, s21, 7")
    k("v_add_u32 v15, s23, v15")
    k("v_lshl_add_u32 v14, v15, 1, v14")
    k(f"s_mov_b32 s27, {fhex(-1.4426950408889634)}")
    T = 16
    for i in range(2):
        for j in range(2):
            acc = ACC + 16 * (2 * i + j)
            for g in range(4):
                vals = [acc + 4 * g + q for q in range(4)]
                for p in range(2):
                    a_, b_ = vals[2 * p], vals[2 * p + 1]
                    t = T + p
                    k(f"v_cvt_pk_bf16_f32 v{t}, v{a_}, v{b_}")
                    k(f"v_lshlrev_b32 v{T+4+2*p}, 16, v{t}")
                    k(f"v_and_b32 v{T+5+2*p}, 0xffff0000, v{t}")
                for q in range(4):
                    x_ = T + 4 + q
                    e_ = T + 8 + q
                    k(f"v_mul_f32 v{e_}, s27, v{x_}")
                    k(f"v_exp_f32 v{e_}, v{e_}")
                for q in range(4):
                    e_ = T + 8 + q
                    k(f"v_add_f32 v{e_}, 1.0, v{e_}")
                    k(f"v_rcp_f32 v{e_}, v{e_}")
                for q in range(4):
                    x_ = T + 4 + q
                    e_ = T + 8 + q
                    k(f"v_mul_f32 v{x_}, v{x_}, v{e_}")
                o = T + 12 + 2 * ((4 * (2 * i + j) + g) % 2)
                k(f"v_cvt_pk_bf16_f32 v{o}, v{T+4}, v{T+5}")
                k(f"v_cvt_pk_bf16_f32 v{o+1}, v{T+6}, v{T+7}")
                off = C_off + i * 32 * ldc * 2 + (j * 32 + 8 * g) * 2
                k(f"s_mov_b32 s26, {off}")
                k(f"buffer_store_dwordx2 v[{o}:{o+1}], v14, s[12:15], s26 offen")
    k.label(f"Lend_{name}")
    k("s_endpgm")
    return k, 148, 104, 4 * TILE_B


def merge(name, roles):
    from asmlib import Kern, Inst
    k = Kern(name)
    total = sum(n for _, n in roles)
    k(f"s_cmp_ge_u32 s2, {total}")
    k(f"s_cbranch_scc1 Lend_{name}")
    base = 0
    for idx, (kk, n) in enumerate(roles):
        if idx < len(roles) - 1:
            k(f"s_cmp_lt_u32 s2, {base + n}")
            k(f"s_cbranch_scc1 Lrole_{name}_{idx}")
        else:
            k(f"s_branch Lrole_{name}_{idx}")
        base += n
    base = 0
    for idx, (kk, n) in enumerate(roles):
        k.label(f"Lrole_{name}_{idx}")
        if base:
            k(f"s_sub_u32 s2, s2, {base}")
        k.items.extend(kk[0].items)
        base += n
    k.label(f"Lend_{name}")
    k("s_endpgm")
    nv = max(kk[1] for kk, _ in roles)
    lds = max(kk[3] for kk, _ in roles)
    return k, nv, 104, lds


def build(launch_sel=None):
    from gemm2 import gen_gemm2
    k1 = gen_k1()
    k2 = gen_k2()
    g1 = gen_gemm2("g1", 0, D, KA_W1, F, H_OFF, FP, D, 16, 11, BM=128, b_bytes=D*F*2, ln_fold=True,
                   a_bytes=S*D*2)
    g2 = gen_gemm2("g2", H_OFF, FP, KA_W2, D, G_OFF, D, F, 32, 4, BM=64, b_bytes=F*D*2)
    k4 = gen_k4()
    l1 = merge("l1", [(g1, 176), (k1, K1_WGS)])
    l2 = merge("l2", [(g2, 128), (k2, K2_WGS)])
    launches = [
        ("l1_kernel", l1, 176 + K1_WGS, 256),
        ("l2_kernel", l2, 128 + K2_WGS, 256),
        ("k4_kernel", k4, K4_WGS, 256),
    ]
    hdr = open("recurrent_scan__spectral_gfnet__dense_activation_silu__prompt.s.ref").read()
    hdr_lines = []
    for line in hdr.split("\n"):
        if line.startswith(";") and "@launch" not in line:
            hdr_lines.append(line)
        elif not line.startswith(";"):
            break
    out = hdr_lines[:]
    for name, kk, grid, block in launches:
        out.append(f"; @launch kernel={name} grid=({grid},1,1) block=({block},1,1) lds={kk[3]}")
    out.append('.amdgcn_target "amdgcn-amd-amdhsa--gfx950"')
    out.append(".text")
    for name, kk, grid, block in launches:
        k, nv, ns, lds = kk
        out.append(f".globl {name}")
        out.append(".p2align 8")
        out.append(f".type {name},@function")
        out.append(f"{name}:")
        out.append(k.finalize())
    out.append('.section .rodata,"a"')
    for name, kk, grid, block in launches:
        k, nv, ns, lds = kk
        acc = (nv + 3) // 4 * 4
        out.append(".p2align 6")
        out.append(f".amdhsa_kernel {name}")
        out.append(f"  .amdhsa_next_free_vgpr {nv}")
        out.append(f"  .amdhsa_next_free_sgpr 102")
        out.append(f"  .amdhsa_accum_offset {acc}")
        out.append("  .amdhsa_group_segment_fixed_size 0")
        out.append("  .amdhsa_kernarg_size 72")
        out.append("  .amdhsa_user_sgpr_count 2")
        out.append("  .amdhsa_user_sgpr_kernarg_segment_ptr 1")
        out.append("  .amdhsa_system_sgpr_workgroup_id_x 1")
        out.append(".end_amdhsa_kernel")
    return "\n".join(out) + "\n"


if __name__ == "__main__":
    txt = build()
    path = sys.argv[1] if len(sys.argv) > 1 else "recurrent_scan__spectral_gfnet__dense_activation_silu__prompt.s"
    open(path, "w").write(txt)
    print("wrote", path, len(txt))
```

```python
from asmlib import Kern, fhex
from gen import srd, KA_WS, WS_BYTES


def gen_gemm2(name, A_off, lda, Bsrd_ptr_ka, ldb, C_off, ldc, Kdim, MT, NT, BM=128, BN=128, NS=4,
              b_bytes=None, ln_fold=False, a_bytes=None):
    k = Kern(name)
    NWG = MT * NT
    NKT = Kdim // 32
    WMW = 2 if BM == 128 else 1
    WNW = 4 // WMW
    TMI = BM // WMW // 32
    TNJ = BN // WNW // 32
    A_BYTES = BM * 64
    B_BYTES = 32 * BN * 2
    STAGE = A_BYTES + B_BYTES
    nda = BM // 64
    ndb = BN // 64
    nd = nda + ndb
    k(f"s_cmp_ge_u32 s2, {NWG}")
    k(f"s_cbranch_scc1 Lend_{name}")
    k(f"s_load_dwordx2 s[6:7], s[0:1], {KA_WS}")
    k(f"s_load_dwordx2 s[4:5], s[0:1], {Bsrd_ptr_ka}")
    if ln_fold:
        k(f"s_load_dwordx2 s[34:35], s[0:1], 0")
    k("s_waitcnt lgkmcnt(0)")
    srd(k, 12, 6, WS_BYTES)
    srd(k, 8, 4, b_bytes)
    ASRD = 12
    if ln_fold:
        srd(k, 36, 34, a_bytes)
        ASRD = 36
    lg = MT.bit_length() - 1
    k(f"s_and_b32 s20, s2, {MT-1}")
    k(f"s_lshr_b32 s21, s2, {lg}")
    k("v_lshrrev_b32 v1, 6, v0")
    k("v_and_b32 v2, 63, v0")
    k("v_readfirstlane_b32 s30, v1")
    k("v_lshrrev_b32 v3, 2, v2")
    k("v_and_b32 v4, 3, v2")
    k("v_bfe_u32 v5, v2, 4, 2")
    k("v_xor_b32 v4, v4, v5")
    k(f"s_mov_b32 s24, {lda*2}")
    k(f"s_mul_i32 s22, s20, {BM*lda*2}")
    k(f"s_mul_i32 s25, s30, {nda*16*lda*2}")
    k("s_add_u32 s22, s22, s25")
    vA = [10 + q for q in range(nda)]
    for q in range(nda):
        k(f"v_add_u32 v6, {16*q}, v3")
        k("v_mul_lo_u32 v6, v6, s24")
        k("v_lshl_add_u32 v6, v4, 4, v6")
        k(f"v_add_u32 v{vA[q]}, s22, v6")
    rpi = 1024 // (BN * 2)
    cpr = BN * 2 // 16
    lgc = cpr.bit_length() - 1
    k(f"v_lshrrev_b32 v3, {lgc}, v2")
    k(f"v_and_b32 v4, {cpr-1}, v2")
    k("v_and_b32 v5, 3, v3")
    k("v_lshlrev_b32 v5, 2, v5")
    k("v_xor_b32 v4, v4, v5")
    k(f"s_mov_b32 s24, {ldb*2}")
    k(f"s_mul_i32 s23, s21, {BN*2}")
    k(f"s_mul_i32 s25, s30, {ndb*rpi*ldb*2}")
    k("s_add_u32 s23, s23, s25")
    vB = [12 + q for q in range(ndb)]
    for q in range(ndb):
        k(f"v_add_u32 v6, {rpi*q}, v3")
        k("v_mul_lo_u32 v6, v6, s24")
        k("v_lshl_add_u32 v6, v4, 4, v6")
        k(f"v_add_u32 v{vB[q]}, s23, v6")
    k(f"s_mul_i32 s31, s30, {nda*1024}")
    k(f"s_mul_i32 s32, s30, {ndb*1024}")
    k(f"s_add_u32 s32, s32, {A_BYTES}")
    if WMW == 2:
        k("v_and_b32 v3, 1, v1")
        k("v_lshrrev_b32 v4, 1, v1")
    else:
        k("v_mov_b32 v3, 0")
        k("v_mov_b32 v4, v1")
    k("v_and_b32 v5, 31, v2")
    k("v_lshrrev_b32 v6, 5, v2")
    k(f"v_mul_u32_u24 v7, {BM//WMW}, v3")
    k("v_add_u32 v7, v7, v5")
    k("v_lshlrev_b32 v7, 6, v7")
    k("v_bfe_u32 v8, v5, 2, 2")
    vFA = [14, 15]
    for ks in range(2):
        k(f"v_add_u32 v9, {2*ks}, v6")
        k("v_xor_b32 v9, v9, v8")
        k(f"v_lshl_add_u32 v{vFA[ks]}, v9, 4, v7")
    k("v_bfe_u32 v7, v2, 2, 2")
    k("v_lshl_add_u32 v8, v6, 3, v7")
    k(f"v_lshlrev_b32 v8, {lgc+4}, v8")
    k("v_bfe_u32 v9, v2, 4, 1")
    k("v_lshl_add_u32 v8, v9, 5, v8")
    k("v_and_b32 v9, 3, v2")
    k("v_lshl_add_u32 v8, v9, 3, v8")
    k(f"v_add_u32 v8, {A_BYTES}, v8")
    vFB = [16 + j for j in range(TNJ)]
    for j in range(TNJ):
        k(f"v_mul_u32_u24 v9, {TNJ}, v4")
        k(f"v_add_u32 v9, {j}, v9")
        k("v_xor_b32 v9, v9, v7")
        k(f"v_lshl_add_u32 v{vFB[j]}, v9, 6, v8")
    FR = 24
    fsz = 4 * (TMI + TNJ)
    ACC = FR + 2 * fsz
    ACC = (ACC + 3) // 4 * 4
    nacc = 16 * TMI * TNJ
    for i in range(nacc):
        k(f"v_mov_b32 v{ACC+i}, 0")
    TAB = NS * STAGE
    CS = ACC + nacc
    if ln_fold:
        XS = CS + 8
        for j in range(TNJ):
            k(f"v_mov_b32 v{CS+j}, 0")
        k("v_lshrrev_b32 v20, 1, v0")
        k("v_and_b32 v21, 1, v0")
        k("v_lshlrev_b32 v22, 6, v20")
        k("v_lshl_add_u32 v22, v21, 5, v22")
        k(f"v_mov_b32 v{CS+4}, 0")
        k(f"v_mov_b32 v{CS+5}, 0")

    def dma(stage):
        slot = stage % NS
        for q in range(nda):
            k(f"s_add_u32 m0, s31, {slot*STAGE + q*1024}")
            k(f"s_mov_b32 s26, {A_off + stage*64}")
            k(f"buffer_load_dwordx4 v{vA[q]}, s[{ASRD}:{ASRD+3}], s26 offen lds")
        for q in range(ndb):
            k(f"s_add_u32 m0, s32, {slot*STAGE + q*1024}")
            k(f"s_mov_b32 s26, {stage*32*ldb*2}")
            k(f"buffer_load_dwordx4 v{vB[q]}, s[8:11], s26 offen lds")

    def read_frags(slot, ks, fs):
        f = FR + fs * fsz
        for i in range(TMI):
            k(f"ds_read_b128 v[{f+4*i}:{f+4*i+3}], v{vFA[ks]} offset:{slot*STAGE + i*32*64}")
        for j in range(TNJ):
            for h in range(2):
                r = f + 4 * TMI + 4 * j + 2 * h
                k(f"ds_read_b64_tr_b16 v[{r}:{r+1}], v{vFB[j]} offset:{slot*STAGE + (16*ks+4*h)*BN*2}")

    nrd = TMI + 2 * TNJ
    if ln_fold:
        k("s_mov_b32 s33, 0x3f803f80")
    for s_ in range(min(NS - 1, NKT)):
        dma(s_)
    for it in range(NKT):
        rem = min(NS - 2, NKT - 1 - it)
        k(f"s_waitcnt vmcnt({rem*nd})")
        k("s_barrier")
        if it + NS - 1 < NKT:
            dma(it + NS - 1)
        slot = it % NS
        read_frags(slot, 0, 0)
        read_frags(slot, 1, 1)
        if ln_fold:
            k(f"ds_read_b128 v[{XS}:{XS+3}], v22 offset:{slot*STAGE}")
            k(f"ds_read_b128 v[{XS+4}:{XS+7}], v22 offset:{slot*STAGE+16}")
        for ks in range(2):
            if ln_fold:
                k(f"s_waitcnt lgkmcnt({nrd+2 if ks == 0 else 0})")
            else:
                k(f"s_waitcnt lgkmcnt({nrd if ks == 0 else 0})")
            f = FR + ks * fsz
            for i in range(TMI):
                for j in range(TNJ):
                    acc = ACC + 16 * (i * TNJ + j)
                    k(f"v_mfma_f32_32x32x16_bf16 v[{acc}:{acc+15}], v[{f+4*TMI+4*j}:{f+4*TMI+4*j+3}], "
                      f"v[{f+4*i}:{f+4*i+3}], v[{acc}:{acc+15}]")
            if ln_fold:
                for j in range(TNJ):
                    for r4 in range(4):
                        k(f"v_dot2_f32_bf16 v{CS+j}, v{f+4*TMI+4*j+r4}, s33, v{CS+j}")
                if ks == 1:
                    for c in range(8):
                        k(f"v_dot2_f32_bf16 v{CS+4}, v{XS+c}, s33, v{CS+4}")
                        k(f"v_dot2_f32_bf16 v{CS+5}, v{XS+c}, v{XS+c}, v{CS+5}")
    if ln_fold:
        k(f"v_mov_b32 v24, v{CS+4}")
        k(f"v_mov_b32 v25, v{CS+5}")
        k(f"ds_swizzle_b32 v26, v24 offset:{(1<<10)|0x1f}")
        k(f"ds_swizzle_b32 v27, v25 offset:{(1<<10)|0x1f}")
        k("s_waitcnt lgkmcnt(0)")
        k("v_add_f32 v24, v24, v26")
        k("v_add_f32 v25, v25, v27")
        k(f"v_mul_f32 v24, {fhex(1.0/512)}, v24")
        k(f"v_mul_f32 v25, {fhex(1.0/512)}, v25")
        k("v_fma_f32 v25, -v24, v24, v25")
        k("v_cvt_pk_bf16_f32 v26, v24, v25")
        k("v_lshlrev_b32 v24, 16, v26")
        k("v_and_b32 v25, 0xffff0000, v26")
        k(f"v_add_f32 v25, {fhex(1e-5)}, v25")
        k("v_cvt_pk_bf16_f32 v26, v25, v25")
        k("v_lshlrev_b32 v25, 16, v26")
        k("v_sqrt_f32 v25, v25")
        k("v_cvt_pk_bf16_f32 v26, v25, v25")
        k("v_lshlrev_b32 v25, 16, v26")
        k("v_rcp_f32 v25, v25")
        k(f"v_lshlrev_b32 v26, 3, v20")
        k(f"v_add_u32 v26, {TAB}, v26")
        k("ds_write_b64 v26, v[24:25]")
        k("v_xor_b32 v26, 32, v2")
        k("v_lshlrev_b32 v26, 2, v26")
        for j in range(TNJ):
            k(f"ds_bpermute_b32 v27, v26, v{CS+j}")
            k("s_waitcnt lgkmcnt(0)")
            k(f"v_add_f32 v{CS+j}, v{CS+j}, v27")
            k(f"v_mul_u32_u24 v27, {TNJ}, v4")
            k(f"v_add_u32 v27, {j}, v27")
            k("v_lshl_add_u32 v27, v27, 5, v5")
            k(f"v_lshlrev_b32 v27, 2, v27")
            k(f"v_add_u32 v27, {TAB+1024}, v27")
            k(f"ds_write_b32 v27, v{CS+j}")
        k("s_waitcnt lgkmcnt(0)")
        k("s_barrier")
    k(f"v_mul_u32_u24 v7, {BM//WMW}, v3")
    k("v_add_u32 v7, v7, v5")
    k(f"s_mul_i32 s22, s20, {BM}")
    k("v_add_u32 v7, s22, v7")
    k(f"s_mov_b32 s24, {ldc*2}")
    k("v_mul_lo_u32 v7, v7, s24")
    k(f"v_mul_u32_u24 v8, {BN//WNW}, v4")
    k("v_lshl_add_u32 v8, v6, 2, v8")
    k(f"s_mul_i32 s23, s21, {BN}")
    k("v_add_u32 v8, s23, v8")
    k("v_lshl_add_u32 v7, v8, 1, v7")
    k(f"s_mov_b32 s27, {fhex(-1.4426950408889634)}")
    T = (XS + 16) if ln_fold else FR
    cnt = 0
    for i in range(TMI):
        for j in range(TNJ):
            acc = ACC + 16 * (i * TNJ + j)
            if ln_fold:
                k(f"v_mul_u32_u24 v26, {BM//WMW}, v3")
                k(f"v_add_u32 v26, {32*i}, v26")
                k("v_add_u32 v26, v26, v5")
                k("v_lshlrev_b32 v26, 3, v26")
                k(f"v_add_u32 v26, {TAB}, v26")
                k(f"ds_read_b64 v[28:29], v26")
            for g in range(4):
                vals = [acc + 4 * g + q for q in range(4)]
                if ln_fold:
                    k(f"v_mul_u32_u24 v26, {TNJ}, v4")
                    k(f"v_add_u32 v26, {j}, v26")
                    k("v_lshlrev_b32 v26, 5, v26")
                    k("v_lshl_add_u32 v26, v6, 2, v26")
                    k(f"v_lshlrev_b32 v26, 2, v26")
                    k(f"v_add_u32 v26, {TAB+1024}, v26")
                    k(f"ds_read_b128 v[32:35], v26 offset:{32*g}")
                    k("s_waitcnt lgkmcnt(0)")
                    for q in range(4):
                        k(f"v_fma_f32 v{vals[q]}, -v28, v{32+q}, v{vals[q]}")
                        k(f"v_mul_f32 v{vals[q]}, v{vals[q]}, v29")
                for p in range(2):
                    t = T + p
                    k(f"v_cvt_pk_bf16_f32 v{t}, v{vals[2*p]}, v{vals[2*p+1]}")
                    k(f"v_lshlrev_b32 v{T+4+2*p}, 16, v{t}")
                    k(f"v_and_b32 v{T+5+2*p}, 0xffff0000, v{t}")
                for q in range(4):
                    k(f"v_mul_f32 v{T+8+q}, s27, v{T+4+q}")
                    k(f"v_exp_f32 v{T+8+q}, v{T+8+q}")
                for q in range(4):
                    k(f"v_add_f32 v{T+8+q}, 1.0, v{T+8+q}")
                    k(f"v_rcp_f32 v{T+8+q}, v{T+8+q}")
                for q in range(4):
                    k(f"v_mul_f32 v{T+4+q}, v{T+4+q}, v{T+8+q}")
                o = T + 12 + 2 * (cnt % 2)
                cnt += 1
                k(f"v_cvt_pk_bf16_f32 v{o}, v{T+4}, v{T+5}")
                k(f"v_cvt_pk_bf16_f32 v{o+1}, v{T+6}, v{T+7}")
                off = C_off + i * 32 * ldc * 2 + (j * 32 + 8 * g) * 2
                k(f"s_mov_b32 s26, {off}")
                k(f"buffer_store_dwordx2 v[{o}:{o+1}], v7, s[12:15], s26 offen")
    k.label(f"Lend_{name}")
    k("s_endpgm")
    nv = ACC + nacc + (8 + 32 if ln_fold else 0)
    return k, nv, 104, NS * STAGE + (2048 if ln_fold else 0)
```
